```python
import torch

def _softmax(x, axis=-1):
    return torch.softmax(x, dim=axis)

def _gelu(x):
    return torch.nn.functional.gelu(x, approximate='tanh')

def _silu(x):
    return torch.nn.functional.silu(x)

def _sigmoid(x):
    return torch.sigmoid(x)

def _layernorm(x, axis=-1, eps=1e-05):
    m = x.mean(dim=axis, keepdim=True)
    v = x.var(dim=axis, keepdim=True, unbiased=False)
    return (x - m) / torch.sqrt(v + eps)

def _scatter_add(tgt, idx, src, axis=0):
    return tgt.clone().index_add_(axis, idx, src)

def _segment_sum(src, seg, n):
    out = torch.zeros((n,) + src.shape[1:], dtype=src.dtype)
    return out.index_add_(0, seg, src)

def _pad(x, pw):
    flat = tuple((v for pair in reversed(pw) for v in pair))
    return torch.nn.functional.pad(x, flat)
kernel_name = 'parallel_sum__linear_kernel_hedgehog__mixer_gmlp__prompt'

def setup_inputs():

    _w = lambda a: (lambda t: t.to(torch.bfloat16) if t.is_floating_point() else t)(torch.as_tensor(a))

    def _A_setup():
        B, S, D, H = (1, 2048, 512, 32)
        Dh = D // H
        return {'x': _w((lambda *s: torch.randn(*s, dtype=torch.bfloat16) * 0.05)(B, S, D)), 'wqkv': _w((lambda *s: torch.randn(*s, dtype=torch.bfloat16) * 0.8)(D, 3 * D)), 'w_phi': _w((lambda *s: torch.randn(*s, dtype=torch.bfloat16) * 0.8)(H, Dh, Dh) * Dh ** (-0.5)), 'wo': _w((lambda *s: torch.randn(*s, dtype=torch.bfloat16) * 0.1)(D, D))}
    _A_in = _A_setup()

    def _B_setup():
        B, S, D, F = (1, 2048, 512, 1376)
        Fh = F // 2
        return {'x': _w((lambda *s: torch.randn(*s, dtype=torch.bfloat16) * 0.05)(B, S, D)), 'w_in': _w((lambda *s: torch.randn(*s, dtype=torch.bfloat16) * 0.4)(D, 2 * Fh)), 'w_sp': _w(0.01 * (lambda *s: torch.randn(*s, dtype=torch.bfloat16) * 0.4)(S, S)), 'b_sp': _w(1.0 + 0.01 * (lambda *s: torch.randn(*s, dtype=torch.bfloat16) * 0.05)(S)), 'w_out': _w((lambda *s: torch.randn(*s, dtype=torch.bfloat16) * 0.05)(Fh, D))}
    _B_in = _B_setup()
    return {'A_x': _A_in['x'], 'A_wqkv': _A_in['wqkv'], 'A_w_phi': _A_in['w_phi'], 'A_wo': _A_in['wo'], 'B_x': _B_in['x'], 'B_w_in': _B_in['w_in'], 'B_w_sp': _B_in['w_sp'], 'B_b_sp': _B_in['b_sp'], 'B_w_out': _B_in['w_out']}

def reference(A_x, A_wqkv, A_w_phi, A_wo, B_x, B_w_in, B_w_sp, B_b_sp, B_w_out):

    def _A_ref(x, wqkv, w_phi, wo):
        B, S, D = x.shape
        H = 32
        Dh = D // H
        qkv = (lambda x, *d: x.permute(*d))((x @ wqkv).reshape(B, S, 3, H, Dh), 2, 0, 3, 1, 4)
        q, k, v = (qkv[0], qkv[1], qkv[2])
        pq = torch.einsum('bhsd,hdf->bhsf', q, w_phi)
        pk = torch.einsum('bhsd,hdf->bhsf', k, w_phi)
        phi_q = torch.concatenate([_softmax(pq, axis=-1), _softmax(-pq, axis=-1)], axis=-1)
        phi_k = torch.concatenate([_softmax(pk, axis=-1), _softmax(-pk, axis=-1)], axis=-1)
        kv = torch.einsum('bhsf,bhsd->bhfd', phi_k, v)
        z = torch.einsum('bhsf->bhf', phi_k)
        num = torch.einsum('bhqf,bhfd->bhqd', phi_q, kv)
        den = torch.einsum('bhqf,bhf->bhq', phi_q, z)[..., None] + 1e-06
        o = num / den
        return (lambda x, *d: x.permute(*d))(o, 0, 2, 1, 3).reshape(B, S, D) @ wo

    def _B_ref(x, w_in, w_sp, b_sp, w_out):
        B, S, D = x.shape
        F = w_in.shape[-1]
        Fh = F // 2
        z = _gelu(torch.einsum('bsd,df->bsf', x, w_in))
        z1 = z[..., :Fh].clone()
        z2 = _layernorm(z[..., Fh:], axis=-1)
        g = torch.einsum('ts,bsf->btf', w_sp, z2) + b_sp[None, :, None]
        return torch.einsum('bsf,fd->bsd', z1 * g, w_out)
    x = A_x
    xn = _layernorm(x, axis=-1)
    return x + _A_ref(xn, A_wqkv, A_w_phi, A_wo) + _B_ref(xn, B_w_in, B_w_sp, B_b_sp, B_w_out)
```

```python
out = []
def e(s): out.append("    " + s)
def lab(s): out.append(s + ":")
def vr(b, n=1): return f"v{b}" if n == 1 else f"v[{b}:{b+n-1}]"
def sr(b, n=1): return f"s{b}" if n == 1 else f"s[{b}:{b+n-1}]"

class Alloc:
    def __init__(self, start): self.n = start
    def __call__(self, cnt=1, al=1):
        self.n = (self.n + al - 1) // al * al
        b = self.n; self.n += cnt
        return b

MB = 1 << 20
WS_PHIQ, WS_Z1, WS_Z2T, WS_Z2NT, WS_STATS, WS_KVP, WS_ZP, WS_A4 = 0, 4*MB, 8*MB, 12*MB, 16*MB, 17*MB, 18*MB, 20*MB
LDZ1 = 1408
LDA4 = 2432

def srd(d, ptr, nbytes, off=0):
    if off:
        e(f"s_add_u32 s{d}, s{ptr}, {off}")
        e(f"s_addc_u32 s{d+1}, s{ptr+1}, 0")
    else:
        e(f"s_mov_b32 s{d}, s{ptr}")
        e(f"s_mov_b32 s{d+1}, s{ptr+1}")
    e(f"s_mov_b32 s{d+2}, {nbytes}")
    e(f"s_mov_b32 s{d+3}, 0x00020000")

def xreduce(ops, regs, tmps):
    for sw in ("v_permlane32_swap_b32", "v_permlane16_swap_b32"):
        for r, t in zip(regs, tmps): e(f"v_mov_b32 v{t}, v{r}")
        if len(regs) < 3: e("s_nop 1")
        for r, t in zip(regs, tmps): e(f"{sw} v{r}, v{t}")
        e("s_nop 0")
        for o, r, t in zip(ops, regs, tmps): e(f"{o} v{r}, v{r}, v{t}")

class Gemm:
    def __init__(s, name, va, sa, MT, bmode, NB, S, nst, nmt, nnt, rot=False):
        s.name, s.MT, s.bmode, s.NB, s.S, s.nst, s.nmt, s.nnt, s.rot = name, MT, bmode, NB, S, nst, nmt, nnt, rot
        s.abytes = MT * 128
        s.bbytes = NB * 128 if bmode == 'dir' else 64 * NB
        s.stage = s.abytes + s.bbytes
        s.nA, s.nB = s.abytes // 4096, s.bbytes // 4096
        s.nD = s.nA + s.nB
        s.lane, s.g, s.i = va(), va(), va()
        s.t0, s.t1, s.t2, s.t3 = va(), va(), va(), va()
        s.vA = [va() for _ in range(s.nA)]
        s.vB = [va() for _ in range(s.nB)]
        s.npA = 4 if rot else 1
        s.aab = [[va() for _ in range(s.npA)] for _ in range(2)]
        s.aac = [[va() for _ in range(s.npA)] for _ in range(2)]
        nb = nnt if bmode == 'tr' else 2
        s.bab = [va() for _ in range(nb)]
        s.bac = [va() for _ in range(nb)]
        s.acc = [[va(4, 4) for _ in range(nnt)] for _ in range(nmt)]
        s.fa = [[va(4, 4) for _ in range(nmt)] for _ in range(2)]
        s.fb = [[va(4, 4) for _ in range(nnt)] for _ in range(2)]
        s.fr0 = s.fa[0][0]; s.frn = va.n - s.fr0
        s.sW, s.sSlot, s.sSlotW, s.sKa, s.sKb, s.sCnt, s.sT = sa(), sa(), sa(), sa(), sa(), sa(), sa()

    def setup_lane(s):
        e(f"v_and_b32 v{s.lane}, 63, v0")
        e(f"v_lshrrev_b32 v{s.t0}, 6, v0")
        e(f"v_lshrrev_b32 v{s.g}, 4, v{s.lane}")
        e(f"v_readfirstlane_b32 s{s.sW}, v{s.t0}")
        e(f"v_and_b32 v{s.i}, 15, v{s.lane}")

    def setup_dir_dma(s, regs, ld, sRowBase):
        t0, t1, t2 = s.t0, s.t1, s.t2
        e(f"s_and_b32 s{s.sT}, s{s.sW}, 1")
        e(f"s_lshl_b32 s{s.sT}, s{s.sT}, 2")
        e(f"v_add_u32 v{t0}, s{s.sT}, v{s.g}")
        e(f"v_and_b32 v{t1}, 7, v{s.lane}")
        e(f"v_xor_b32 v{t0}, v{t0}, v{t1}")
        e(f"v_lshlrev_b32 v{t0}, 4, v{t0}")
        e(f"s_lshl_b32 s{s.sT}, s{s.sW}, 3")
        e(f"s_add_u32 s{s.sT}, s{s.sT}, s{sRowBase}")
        e(f"v_lshrrev_b32 v{t1}, 3, v{s.lane}")
        e(f"v_add_u32 v{t1}, s{s.sT}, v{t1}")
        e(f"s_mov_b32 s{s.sT}, {ld}")
        e(f"v_mad_u32_u24 v{regs[0]}, v{t1}, s{s.sT}, v{t0}")
        for k in range(1, len(regs)):
            e(f"v_add_u32 v{regs[k]}, {32*ld*k}, v{regs[0]}")

    def setup_tr_dma(s, sLd, sSeg, sColB):
        cpr = s.NB // 16
        t0, t1, t2, t3 = s.t0, s.t1, s.t2, s.t3
        for k in range(s.nB):
            e(f"s_lshl_b32 s{s.sT}, s{s.sW}, 6")
            e(f"s_add_u32 s{s.sT}, s{s.sT}, {256*k}")
            e(f"v_add_u32 v{t0}, s{s.sT}, v{s.lane}")
            if cpr == 24:
                e(f"v_mul_u32_u24 v{t1}, 2731, v{t0}")
                e(f"v_lshrrev_b32 v{t1}, 16, v{t1}")
                e(f"v_mul_u32_u24 v{t2}, 24, v{t1}")
                e(f"v_sub_u32 v{t0}, v{t0}, v{t2}")
            else:
                e(f"v_lshrrev_b32 v{t1}, 3, v{t0}")
                e(f"v_and_b32 v{t0}, 7, v{t0}")
            e(f"v_and_b32 v{t2}, 2, v{t1}")
            e(f"v_lshrrev_b32 v{t3}, 1, v{t1}")
            e(f"v_and_b32 v{t3}, 4, v{t3}")
            e(f"v_or_b32 v{t2}, v{t2}, v{t3}")
            e(f"v_xor_b32 v{t0}, v{t0}, v{t2}")
            e(f"v_lshrrev_b32 v{t2}, 3, v{t0}")
            e(f"v_mul_lo_u32 v{t2}, v{t2}, s{sSeg}")
            e(f"v_lshl_add_u32 v{t0}, v{t0}, 4, v{t2}")
            e(f"v_mul_lo_u32 v{t1}, v{t1}, s{sLd}")
            e(f"v_add3_u32 v{s.vB[k]}, v{t0}, v{t1}, s{sColB}")

    def setup_reads(s, sMrow, sNq, qstep):
        t0, t1, t2 = s.t0, s.t1, s.t2
        e(f"v_lshrrev_b32 v{t0}, 1, v{s.i}")
        e(f"v_xor_b32 v{t0}, v{t0}, v{s.g}")
        e(f"v_lshlrev_b32 v{t0}, 4, v{t0}")
        e(f"v_lshl_add_u32 v{t0}, v{s.i}, 7, v{t0}")
        e(f"v_xor_b32 v{t1}, 64, v{t0}")
        for p in range(s.npA):
            e(f"s_lshl_b32 s{s.sT}, s{sMrow[p]}, 7")
            e(f"v_add_u32 v{s.aab[0][p]}, s{s.sT}, v{t0}")
            e(f"v_add_u32 v{s.aab[1][p]}, s{s.sT}, v{t1}")
        if s.bmode == 'dir':
            e(f"s_lshl_b32 s{s.sT}, s{sNq}, 7")
            e(f"s_add_u32 s{s.sT}, s{s.sT}, {s.abytes}")
            e(f"v_add_u32 v{s.bab[0]}, s{s.sT}, v{t0}")
            e(f"v_add_u32 v{s.bab[1]}, s{s.sT}, v{t1}")
        else:
            e(f"v_lshrrev_b32 v{t0}, 2, v{s.i}")
            e(f"v_lshl_add_u32 v{t0}, v{s.g}, 3, v{t0}")
            e(f"v_mul_u32_u24 v{t0}, {s.NB}, v{t0}")
            e(f"v_and_b32 v{t1}, 3, v{s.i}")
            e(f"v_lshl_add_u32 v{t0}, v{t1}, 3, v{t0}")
            e(f"v_add_u32 v{t0}, {s.abytes}, v{t0}")
            e(f"v_lshrrev_b32 v{t1}, 3, v{s.i}")
            e(f"v_and_b32 v{t2}, 1, v{s.g}")
            e(f"v_lshl_or_b32 v{t1}, v{t2}, 1, v{t1}")
            for t in range(s.nnt):
                e(f"s_add_u32 s{s.sT}, s{sNq}, {qstep*t}")
                e(f"v_xor_b32 v{t2}, s{s.sT}, v{t1}")
                e(f"v_lshl_add_u32 v{s.bab[t]}, v{t2}, 5, v{t0}")

    def dma(s, srdA, srdB):
        for k in range(s.nA):
            e(f"s_add_u32 m0, s{s.sSlotW}, {4096*k}")
            e("s_nop 0")
            e(f"buffer_load_dwordx4 v{s.vA[k]}, {sr(srdA,4)}, s{s.sKa} offen lds")
        for k in range(s.nB):
            e(f"s_add_u32 m0, s{s.sSlotW}, {s.abytes + 4096*k}")
            e("s_nop 0")
            e(f"buffer_load_dwordx4 v{s.vB[k]}, {sr(srdB,4)}, s{s.sKb} offen lds")

    def cur_addrs(s):
        for hh in range(2):
            for p in range(s.npA): e(f"v_add_u32 v{s.aac[hh][p]}, s{s.sSlot}, v{s.aab[hh][p]}")
        for a, b in zip(s.bac, s.bab): e(f"v_add_u32 v{a}, s{s.sSlot}, v{b}")

    def reads(s, hh):
        for t in range(s.nnt):
            if s.bmode == 'dir':
                e(f"ds_read_b128 {vr(s.fb[hh][t],4)}, v{s.bac[hh]} offset:{2048*t}")
            else:
                e(f"ds_read_b64_tr_b16 {vr(s.fb[hh][t],2)}, v{s.bac[t]} offset:{32*hh*s.NB}")
                e(f"ds_read_b64_tr_b16 {vr(s.fb[hh][t]+2,2)}, v{s.bac[t]} offset:{(32*hh+4)*s.NB}")
        for m in range(s.nmt):
            if s.rot: e(f"ds_read_b128 {vr(s.fa[hh][m],4)}, v{s.aac[hh][m>>1]} offset:{2048*(m&1)}")
            else: e(f"ds_read_b128 {vr(s.fa[hh][m],4)}, v{s.aac[hh][0]} offset:{2048*m}")

    def mfmas(s, hh, extra=None):
        ex = list(extra(hh)) if extra else []
        for m in range(s.nmt):
            for t in range(s.nnt):
                e(f"v_mfma_f32_16x16x32_bf16 {vr(s.acc[m][t],4)}, {vr(s.fb[hh][t],4)}, {vr(s.fa[hh][m],4)}, {vr(s.acc[m][t],4)}")
                if ex: e(ex.pop(0))
        for x in ex: e(x)

    def run(s, srdA, srdB, advance, extra=None):
        for m in range(s.nmt):
            for t in range(s.nnt):
                for r in range(4): e(f"v_mov_b32 v{s.acc[m][t]+r}, 0")
        e(f"s_lshl_b32 s{s.sSlotW}, s{s.sW}, 10")
        e(f"s_mov_b32 s{s.sCnt}, 0")
        for st in range(s.S):
            s.dma(srdA, srdB)
            e(f"s_add_u32 s{s.sCnt}, s{s.sCnt}, 1")
            advance()
            if st < s.S - 1: e(f"s_add_u32 s{s.sSlotW}, s{s.sSlotW}, {s.stage}")
        e(f"s_lshl_b32 s{s.sSlotW}, s{s.sW}, 10")
        e(f"s_mov_b32 s{s.sSlot}, 0")
        s.cur_addrs()
        e(f"s_waitcnt vmcnt({(s.S-1)*s.nD})")
        e("s_barrier")
        s.reads(0)
        lab(f"L_{s.name}_loop")
        e("s_waitcnt lgkmcnt(0)")
        s.reads(1)
        s.mfmas(0, extra)
        e(f"s_waitcnt vmcnt({(s.S-2)*s.nD}) lgkmcnt(0)")
        e("s_barrier")
        s.dma(srdA, srdB)
        e(f"s_add_u32 s{s.sCnt}, s{s.sCnt}, 1")
        advance()
        e(f"s_add_u32 s{s.sSlot}, s{s.sSlot}, {s.stage}")
        e(f"s_cmp_eq_u32 s{s.sSlot}, {s.stage*s.S}")
        e(f"s_cselect_b32 s{s.sSlot}, 0, s{s.sSlot}")
        e(f"s_lshl_b32 s{s.sSlotW}, s{s.sW}, 10")
        e(f"s_add_u32 s{s.sSlotW}, s{s.sSlotW}, s{s.sSlot}")
        s.cur_addrs()
        s.reads(0)
        s.mfmas(1, extra)
        e(f"s_cmp_lt_u32 s{s.sCnt}, {s.nst + s.S}")
        e(f"s_cbranch_scc1 L_{s.name}_loop")
        e("s_waitcnt lgkmcnt(0)")
        e("s_nop 7")
```

```python
from core import *
L2E = 0x3fb8aa3b
import struct
def f32(x): return struct.unpack('<I', struct.pack('<f', x))[0]

def k1():
    va, sa = Alloc(1), Alloc(40)
    G = Gemm("k1", va, sa, 128, 'tr', 384, 3, 8, 8, 3, rot=True)
    LDSX = G.stage * G.S
    cs = [va(4, 4) for _ in range(3)]
    ones = va(4, 4)
    ss = [va() for _ in range(4)]
    wph = va(4, 2); idm = va(2, 2)
    sRB, sCT, sRow, sLd, sSeg, sColB, sL, sIsZ, sZi = [sa() for _ in range(9)]
    sTok = [sa() for _ in range(4)]
    sC0, sC1, sNv = sa(), sa(), sa()
    SX, SW, SP, SO, SO2 = 16, 20, 24, 28, 32
    lab("k1_kernel")
    e("s_cmp_ge_u32 s2, 256"); e("s_cbranch_scc1 L_k1_end")
    e("s_load_dwordx2 s[4:5], s[0:1], 0"); e("s_load_dwordx2 s[6:7], s[0:1], 8")
    e("s_load_dwordx2 s[8:9], s[0:1], 16"); e("s_load_dwordx2 s[10:11], s[0:1], 40")
    e("s_load_dwordx2 s[12:13], s[0:1], 88")
    G.setup_lane()
    e(f"s_lshr_b32 s{sRB}, s2, 4"); e(f"s_and_b32 s{sCT}, s2, 15")
    e(f"s_lshl_b32 s{sRow}, s{sRB}, 7")
    e(f"s_lshr_b32 s{sIsZ}, s{sCT}, 3")
    e(f"s_and_b32 s{sZi}, s{sCT}, 3")
    e(f"s_mul_i32 s{sColB}, s{sZi}, 352")
    e(f"s_bfe_u32 s3, s{sCT}, 0x10002"); e("s_mul_i32 s3, s3, 1376")
    e(f"s_add_u32 s{sColB}, s{sColB}, s3")
    e(f"s_lshl_b32 s3, s{sCT}, 7")
    e(f"s_cmp_eq_u32 s{sIsZ}, 1")
    e(f"s_cselect_b32 s{sColB}, s{sColB}, s3")
    e(f"s_mov_b32 s{sLd}, 3072"); e(f"s_cselect_b32 s{sLd}, 2752, s{sLd}")
    e(f"s_cselect_b32 s{sSeg}, 0, 896")
    e("s_waitcnt lgkmcnt(0)")
    srd(SX, 4, 2048*1024)
    e(f"s_cselect_b32 s{SW}, s10, s6"); e(f"s_cselect_b32 s{SW+1}, s11, s7")
    e(f"s_mov_b32 s{SW+2}, {512*3072}"); e(f"s_cselect_b32 s{SW+2}, {512*2752}, s{SW+2}"); e(f"s_mov_b32 s{SW+3}, 0x00020000")
    srd(SP, 8, 32*512)
    for p in range(4):
        e(f"s_add_u32 s{sTok[p]}, s{G.sW}, {p}"); e(f"s_and_b32 s{sTok[p]}, s{sTok[p]}, 3")
        e(f"s_lshl_b32 s{sTok[p]}, s{sTok[p]}, 5")
    e(f"s_and_b32 s3, s{sCT}, 7"); e("s_lshl_b32 s3, s3, 2"); e(f"s_add_u32 s3, s3, s{G.sW}"); e("s_lshl_b32 s3, s3, 9")
    e(f"v_lshlrev_b32 v{G.t0}, 7, v{G.g}"); e(f"v_lshl_add_u32 v{G.t0}, v{G.i}, 1, v{G.t0}")
    for r in range(4): e(f"buffer_load_ushort v{wph+r}, v{G.t0}, {sr(SP,4)}, s3 offen offset:{32*r}")
    G.setup_dir_dma(G.vA, 1024, sRow)
    G.setup_tr_dma(sLd, sSeg, sColB)
    G.setup_reads(sTok, G.sW, 4)
    e(f"s_mov_b32 s{G.sKa}, 0"); e(f"s_mov_b32 s{G.sKb}, 0")
    e(f"s_lshl_b32 s{sLd}, s{sLd}, 6")
    for r in range(4): e(f"v_mov_b32 v{ones+r}, 0x3f803f80")
    for t in range(3):
        for r in range(4): e(f"v_mov_b32 v{cs[t]+r}, 0")
    for r in ss: e(f"v_mov_b32 v{r}, 0")
    e(f"v_lshlrev_b32 v{G.t0}, 2, v{G.g}"); e(f"v_sub_u32 v{G.t0}, v{G.i}, v{G.t0}")
    e(f"v_mov_b32 v{G.t1}, 0x3f80"); e(f"v_mov_b32 v{G.t2}, 0x3f800000")
    for q in range(2):
        e(f"v_cmp_eq_u32 vcc, {2*q}, v{G.t0}"); e("s_nop 1"); e(f"v_cndmask_b32 v{idm+q}, 0, v{G.t1}, vcc")
        e(f"v_cmp_eq_u32 vcc, {2*q+1}, v{G.t0}"); e("s_nop 1"); e(f"v_cndmask_b32 v{idm+q}, v{idm+q}, v{G.t2}, vcc")
    def advance():
        e(f"s_add_u32 s{G.sKa}, s{G.sKa}, 128"); e(f"s_add_u32 s{G.sKb}, s{G.sKb}, s{sLd}")
        e(f"s_cmp_lt_u32 s{G.sCnt}, {G.nst}")
        e(f"s_cselect_b32 s{SX+2}, s{SX+2}, 0")
    def extra(hh):
        x = [f"v_mfma_f32_16x16x32_bf16 {vr(cs[t],4)}, {vr(G.fb[hh][t],4)}, {vr(ones,4)}, {vr(cs[t],4)}" for t in range(3)]
        for r in range(4):
            for m in range(2):
                a = G.fa[hh][m] + r
                x.append(f"v_dot2_f32_bf16 v{ss[m]}, v{a}, v{ones}, v{ss[m]}")
                x.append(f"v_dot2_f32_bf16 v{ss[2+m]}, v{a}, v{a}, v{ss[2+m]}")
        return x
    G.run(SX, SW, advance, extra)
    ta = Alloc(G.fr0)
    tm = [ta() for _ in range(8)]
    mr = [ta(2, 2) for _ in range(8)]
    xreduce(["v_add_f32"]*4, ss, tm[:4])
    e(f"s_mov_b32 s3, {f32(1/512)}")
    e(f"v_lshlrev_b32 v{tm[4]}, 3, v{G.i}")
    e(f"s_lshl_b32 s{G.sT}, s{sTok[0]}, 3"); e(f"s_add_u32 s{G.sT}, s{G.sT}, {LDSX}")
    e(f"v_add_u32 v{tm[5]}, s{G.sT}, v{tm[4]}")
    for m in range(2):
        a = mr[m]
        e(f"v_mul_f32 v{a}, s3, v{ss[m]}"); e(f"v_mul_f32 v{a+1}, s3, v{ss[2+m]}")
        e(f"v_fma_f32 v{a+1}, -v{a}, v{a}, v{a+1}"); e(f"v_max_f32 v{a+1}, 0, v{a+1}")
        e(f"v_add_f32 v{a+1}, {f32(1e-5)}, v{a+1}"); e(f"v_rsq_f32 v{a+1}, v{a+1}"); e("s_nop 0")
        e(f"ds_write_b64 v{tm[5]}, {vr(a,2)} offset:{128*m}")
    e("s_waitcnt lgkmcnt(0)"); e("s_barrier")
    for p in range(1, 4):
        e(f"s_lshl_b32 s{G.sT}, s{sTok[p]}, 3"); e(f"s_add_u32 s{G.sT}, s{G.sT}, {LDSX}")
        e(f"v_add_u32 v{tm[5]}, s{G.sT}, v{tm[4]}")
        for m in range(2): e(f"ds_read_b64 {vr(mr[2*p+m],2)}, v{tm[5]} offset:{128*m}")
    e("s_waitcnt lgkmcnt(0)")
    for m in range(8):
        for t in range(3):
            for r in range(4):
                a = G.acc[m][t] + r
                e(f"v_fma_f32 v{a}, -v{mr[m]}, v{cs[t]+r}, v{a}")
                e(f"v_mul_f32 v{a}, v{mr[m]+1}, v{a}")
    tok = [ta() for _ in range(8)]
    for m in range(8):
        e(f"s_add_u32 s{G.sT}, s{sTok[m>>1]}, s{sRow}")
        if m & 1: e(f"s_add_u32 s{G.sT}, s{G.sT}, 16")
        e(f"v_add_u32 v{tok[m]}, s{G.sT}, v{G.i}")
    e(f"s_cmp_eq_u32 s{sIsZ}, 1"); e("s_cbranch_scc1 L_k1_z")
    srd(SO, 12, 4*MB, WS_PHIQ); srd(SO2, 12, 2*MB, WS_KVP)
    e(f"s_mov_b32 s{sL}, {L2E}")
    kv = [ta(4, 4) for _ in range(4)]
    for k in kv:
        for r in range(4): e(f"v_mov_b32 v{k+r}, 0")
    pk = [ta(2, 2) for _ in range(6)]
    e("s_waitcnt vmcnt(0)")
    e(f"v_lshl_or_b32 v{wph}, v{wph+1}, 16, v{wph}"); e(f"v_lshl_or_b32 v{wph+1}, v{wph+3}, 16, v{wph+2}")
    for m in range(8):
        o = 3 * (m & 1)
        for t in range(3):
            a = G.acc[m][t]
            e(f"v_cvt_pk_bf16_f32 v{pk[o+t]}, v{a}, v{a+1}"); e(f"v_cvt_pk_bf16_f32 v{pk[o+t]+1}, v{a+2}, v{a+3}")
        e("s_nop 1")
        e(f"v_mfma_f32_16x16x16_bf16 {vr(G.acc[m][0],4)}, {vr(wph,2)}, {vr(pk[o],2)}, 0")
        e(f"v_mfma_f32_16x16x16_bf16 {vr(G.acc[m][1],4)}, {vr(wph,2)}, {vr(pk[o+1],2)}, 0")
        e(f"v_mfma_f32_16x16x16_bf16 {vr(G.acc[m][2],4)}, {vr(pk[o+2],2)}, {vr(idm,2)}, 0")
    e(f"s_and_b32 s3, s{sCT}, 7"); e("s_lshl_b32 s3, s3, 2"); e(f"s_add_u32 s3, s3, s{G.sW}")
    e(f"s_lshl_b32 s{G.sT}, s3, 6")
    e(f"v_lshlrev_b32 v{tm[6]}, 4, v{G.g}"); e(f"v_add_u32 v{tm[6]}, s{G.sT}, v{tm[6]}")
    st = [ta() for _ in range(4)]
    ex = [[ta(4, 4) for _ in range(2)] for _ in range(2)]
    tr = [ta(4, 4) for _ in range(2)]
    e("s_nop 4")
    for m in range(8):
        for j in range(2):
            a = G.acc[m][j]
            e(f"v_max3_f32 v{st[j]}, v{a}, v{a+1}, v{a+2}"); e(f"v_min3_f32 v{st[2+j]}, v{a}, v{a+1}, v{a+2}")
            e(f"v_max_f32 v{st[j]}, v{st[j]}, v{a+3}"); e(f"v_min_f32 v{st[2+j]}, v{st[2+j]}, v{a+3}")
        xreduce(["v_max_f32"]*2 + ["v_min_f32"]*2, st, tm[:4])
        for q in st: e(f"v_mul_f32 v{q}, s{sL}, v{q}")
        for j in range(2):
            a = G.acc[m][j]
            for r in range(4):
                e(f"v_fma_f32 v{ex[j][0]+r}, v{a+r}, s{sL}, -v{st[j]}")
                e(f"v_fma_f32 v{ex[j][1]+r}, -v{a+r}, s{sL}, v{st[2+j]}")
        for j in range(2):
            for sg in range(2):
                for r in range(4): e(f"v_exp_f32 v{ex[j][sg]+r}, v{ex[j][sg]+r}")
        a = G.acc[m][2]
        e(f"v_cvt_pk_bf16_f32 v{pk[4]}, v{a}, v{a+1}"); e(f"v_cvt_pk_bf16_f32 v{pk[4]+1}, v{a+2}, v{a+3}")
        for j in range(2):
            for sg in range(2):
                b = ex[j][sg]; q = st[2*sg+j]
                e(f"v_add_f32 v{q}, v{b}, v{b+1}"); e(f"v_add_f32 v{tm[4]}, v{b+2}, v{b+3}"); e(f"v_add_f32 v{q}, v{q}, v{tm[4]}")
        xreduce(["v_add_f32"]*4, st, tm[:4])
        for q in st: e(f"v_rcp_f32 v{q}, v{q}")
        e(f"v_lshl_add_u32 v{tm[7]}, v{tok[m]}, 11, v{tm[6]}")
        for j in range(2):
            for sg in range(2):
                b = ex[j][sg]; q = st[2*sg+j]
                for r in range(4): e(f"v_mul_f32 v{b+r}, v{q}, v{b+r}")
        a = G.acc[m][0]
        for sg in range(2):
            b = ex[0][sg]
            e(f"v_cvt_pk_bf16_f32 v{a+2*sg}, v{b}, v{b+1}"); e(f"v_cvt_pk_bf16_f32 v{a+2*sg+1}, v{b+2}, v{b+3}")
            b = ex[1][sg]
            e(f"v_cvt_pk_bf16_f32 v{pk[sg]}, v{b}, v{b+1}"); e(f"v_cvt_pk_bf16_f32 v{pk[sg]+1}, v{b+2}, v{b+3}")
        e(f"buffer_store_dwordx4 {vr(a,4)}, v{tm[7]}, {sr(SO,4)}, 0 offen")
        e("s_nop 0")
        for sg in range(2):
            e(f"v_mfma_f32_16x16x16_bf16 {vr(tr[sg],4)}, {vr(pk[sg],2)}, {vr(idm,2)}, 0")
        e("s_nop 7")
        for sg in range(2):
            b = tr[sg]
            e(f"v_cvt_pk_bf16_f32 v{pk[2+sg]}, v{b}, v{b+1}"); e(f"v_cvt_pk_bf16_f32 v{pk[2+sg]+1}, v{b+2}, v{b+3}")
        e("s_nop 1")
        for sg in range(2):
            e(f"v_mfma_f32_16x16x16_bf16 {vr(kv[sg],4)}, {vr(pk[2+sg],2)}, {vr(pk[4],2)}, {vr(kv[sg],4)}")
            e(f"v_mfma_f32_16x16x16_bf16 {vr(kv[2+sg],4)}, {vr(pk[2+sg],2)}, {vr(ones,2)}, {vr(kv[2+sg],4)}")
    e(f"s_lshl_b32 s{G.sT}, s{sRB}, 5"); e(f"s_add_u32 s3, s3, s{G.sT}")
    e(f"s_lshl_b32 s{G.sT}, s3, 11"); e("s_lshl_b32 s3, s3, 7"); e(f"s_add_u32 s3, s3, {WS_ZP-WS_KVP}")
    e(f"v_lshlrev_b32 v{tm[0]}, 5, v{G.lane}"); e(f"v_lshlrev_b32 v{tm[1]}, 5, v{G.g}")
    e("s_nop 4")
    e(f"buffer_store_dwordx4 {vr(kv[0],4)}, v{tm[0]}, {sr(SO2,4)}, s{G.sT} offen")
    e(f"buffer_store_dwordx4 {vr(kv[1],4)}, v{tm[0]}, {sr(SO2,4)}, s{G.sT} offen offset:16")
    e(f"v_cmp_eq_u32 vcc, 0, v{G.i}"); e("s_and_saveexec_b64 s[36:37], vcc")
    e(f"buffer_store_dwordx4 {vr(kv[2],4)}, v{tm[1]}, {sr(SO2,4)}, s3 offen")
    e(f"buffer_store_dwordx4 {vr(kv[3],4)}, v{tm[1]}, {sr(SO2,4)}, s3 offen offset:16")
    e("s_endpgm")
    lab("L_k1_z")
    c0 = -2.0 * 0.7978845608028654 * 1.4426950408889634
    e(f"s_mov_b32 s{sC0}, {f32(c0)}"); e(f"v_mov_b32 v{tm[7]}, {f32(c0*0.044715)}")
    e(f"s_cmp_eq_u32 s{sZi}, 3"); e(f"s_cselect_b32 s{sNv}, 2, 3")
    for m in range(8):
        for t in range(3):
            a = G.acc[m][t]
            for r in range(4): e(f"v_mul_f32 v{tm[r]}, v{a+r}, v{a+r}")
            for r in range(4): e(f"v_fma_f32 v{tm[r]}, v{tm[r]}, v{tm[7]}, s{sC0}")
            for r in range(4): e(f"v_mul_f32 v{tm[r]}, v{tm[r]}, v{a+r}")
            for r in range(4): e(f"v_exp_f32 v{tm[r]}, v{tm[r]}")
            for r in range(4): e(f"v_add_f32 v{tm[r]}, 1.0, v{tm[r]}")
            for r in range(4): e(f"v_rcp_f32 v{tm[r]}, v{tm[r]}")
            for r in range(4): e(f"v_mul_f32 v{a+r}, v{tm[r]}, v{a+r}")
    e(f"s_mul_i32 s{sColB}, s{sZi}, 176"); e(f"s_lshl_b32 s3, s{G.sW}, 4"); e(f"s_add_u32 s{sColB}, s{sColB}, s3")
    e(f"s_bitcmp1_b32 s{sCT}, 2"); e("s_cbranch_scc1 L_k1_z2")
    srd(SO, 12, 2048*LDZ1, WS_Z1)
    e(f"s_lshl_b32 s3, s{sColB}, 1"); e(f"v_lshlrev_b32 v{tm[6]}, 3, v{G.g}"); e(f"v_add_u32 v{tm[6]}, s3, v{tm[6]}")
    e(f"s_mov_b32 s3, {LDZ1}")
    for m in range(8): e(f"v_mad_u32_u24 v{tok[m]}, v{tok[m]}, s3, v{tm[6]}")
    for t in range(3):
        if t == 2: e(f"s_cmp_ge_u32 s{G.sW}, s{sNv}"); e("s_cbranch_scc1 L_k1_end")
        for m in range(8):
            a = G.acc[m][t]
            e(f"v_cvt_pk_bf16_f32 v{a}, v{a}, v{a+1}"); e(f"v_cvt_pk_bf16_f32 v{a+1}, v{a+2}, v{a+3}")
            e(f"buffer_store_dwordx2 {vr(a,2)}, v{tok[m]}, {sr(SO,4)}, 0 offen offset:{128*t}")
    e("s_endpgm")
    lab("L_k1_z2")
    srd(SO, 12, 688*4096, WS_Z2T); srd(SO2, 12, 65536, WS_STATS)
    e(f"s_cmp_lt_u32 s{G.sW}, s{sNv}"); e("s_cbranch_scc1 L_k1_z2v")
    for m in range(8):
        for r in range(4): e(f"v_mov_b32 v{G.acc[m][2]+r}, 0")
    lab("L_k1_z2v")
    for m in range(8):
        a, b = mr[m], mr[m] + 1
        l = [G.acc[m][t] + r for t in range(3) for r in range(4)]
        e(f"v_add_f32 v{a}, v{l[0]}, v{l[1]}"); e(f"v_mul_f32 v{b}, v{l[0]}, v{l[0]}"); e(f"v_fmac_f32 v{b}, v{l[1]}, v{l[1]}")
        for x in l[2:]: e(f"v_add_f32 v{a}, v{a}, v{x}"); e(f"v_fmac_f32 v{b}, v{x}, v{x}")
    for h in range(4):
        xreduce(["v_add_f32"]*4, [mr[2*h], mr[2*h]+1, mr[2*h+1], mr[2*h+1]+1], tm[:4])
    e(f"s_lshl_b32 s3, s{G.sW}, 10"); e(f"s_add_u32 s3, s3, {LDSX+1024}")
    for p in range(4):
        e(f"s_lshl_b32 s{G.sT}, s{sTok[p]}, 3"); e(f"s_add_u32 s{G.sT}, s{G.sT}, s3")
        e(f"v_add_u32 v{tm[5]}, s{G.sT}, v{tm[4]}")
        for m in range(2): e(f"ds_write_b64 v{tm[5]}, {vr(mr[2*p+m],2)} offset:{128*m}")
    for m in range(8):
        for t in range(3):
            a = G.acc[m][t]
            e(f"v_cvt_pk_bf16_f32 v{pk[t]}, v{a}, v{a+1}"); e(f"v_cvt_pk_bf16_f32 v{pk[t]+1}, v{a+2}, v{a+3}")
        e("s_nop 1")
        for t in range(3): e(f"v_mfma_f32_16x16x16_bf16 {vr(G.acc[m][t],4)}, {vr(pk[t],2)}, {vr(idm,2)}, 0")
    e("s_waitcnt lgkmcnt(0)"); e("s_barrier")
    e(f"v_lshlrev_b32 v{tm[5]}, 2, v0")
    e(f"v_add_u32 v{tm[6]}, {LDSX+1024}, v{tm[5]}")
    for w in range(4): e(f"ds_read_b32 v{tm[w]}, v{tm[6]} offset:{1024*w}")
    e(f"s_lshl_b32 s3, s{sZi}, 14"); e(f"s_lshl_b32 s{G.sT}, s{sRow}, 3"); e(f"s_add_u32 s3, s3, s{G.sT}")
    e("s_waitcnt lgkmcnt(0)")
    e(f"v_add_f32 v{tm[0]}, v{tm[0]}, v{tm[1]}"); e(f"v_add_f32 v{tm[2]}, v{tm[2]}, v{tm[3]}"); e(f"v_add_f32 v{tm[0]}, v{tm[0]}, v{tm[2]}")
    e(f"buffer_store_dword v{tm[0]}, v{tm[5]}, {sr(SO2,4)}, s3 offen")
    e(f"v_add_u32 v{tm[6]}, s{sColB}, v{G.i}"); e(f"v_lshlrev_b32 v{tm[6]}, 12, v{tm[6]}")
    e(f"v_lshl_add_u32 v{tm[6]}, v{G.g}, 3, v{tm[6]}")
    for p in range(4):
        e(f"s_add_u32 s{G.sT}, s{sTok[p]}, s{sRow}"); e(f"s_lshl_b32 s{G.sT}, s{G.sT}, 1")
        e(f"v_add_u32 v{tok[p]}, s{G.sT}, v{tm[6]}")
    for t in range(3):
        if t == 2: e(f"s_cmp_ge_u32 s{G.sW}, s{sNv}"); e("s_cbranch_scc1 L_k1_end")
        e(f"s_mov_b32 s3, {64*4096*t}")
        for m in range(8):
            a = G.acc[m][t]
            e(f"v_cvt_pk_bf16_f32 v{a}, v{a}, v{a+1}"); e(f"v_cvt_pk_bf16_f32 v{a+1}, v{a+2}, v{a+3}")
            e(f"buffer_store_dwordx2 {vr(a,2)}, v{tok[m>>1]}, {sr(SO,4)}, s3 offen offset:{32*(m&1)}")
    lab("L_k1_end")
    e("s_endpgm")
    assert ta.n <= G.fr0 + G.frn, (ta.n, G.fr0 + G.frn)
    return va.n, LDSX + 1024 + 4096
```

```python
from core import *
from k1 import f32

def ojob(sId, pfx):
    va = Alloc(1)
    lane, g, i, t0, t1, t2 = [va() for _ in range(6)]
    kvp = [va(8, 4) for _ in range(16)]
    zp = va(8, 4); akv = va(4, 4); az = va(4, 4)
    ph = [va(4, 4) for _ in range(16)]
    SK, SQ, SA = 16, 20, 24
    srd(SK, 12, 2*MB, WS_KVP); srd(SQ, 12, 4*MB, WS_PHIQ); srd(SA, 12, 2048*LDA4, WS_A4)
    e(f"v_and_b32 v{lane}, 63, v0"); e(f"v_lshrrev_b32 v{t0}, 6, v0"); e(f"v_lshrrev_b32 v{g}, 4, v{lane}")
    e(f"v_readfirstlane_b32 s40, v{t0}"); e(f"v_and_b32 v{i}, 15, v{lane}")
    e(f"s_and_b32 s41, s{sId}, 7"); e("s_lshl_b32 s41, s41, 2"); e("s_add_u32 s41, s41, s40")
    e(f"s_lshr_b32 s42, s{sId}, 3"); e("s_lshl_b32 s42, s42, 8")
    e(f"v_lshlrev_b32 v{t0}, 5, v{lane}"); e("s_lshl_b32 s43, s41, 11")
    for rb in range(16):
        e(f"buffer_load_dwordx4 {vr(kvp[rb],4)}, v{t0}, {sr(SK,4)}, s43 offen")
        e(f"buffer_load_dwordx4 {vr(kvp[rb]+4,4)}, v{t0}, {sr(SK,4)}, s43 offen offset:16")
        if rb < 15: e("s_add_u32 s43, s43, 65536")
    e(f"v_lshlrev_b32 v{t1}, 12, v{i}"); e(f"v_lshl_add_u32 v{t1}, v{g}, 5, v{t1}")
    e("s_lshl_b32 s43, s41, 7"); e(f"s_add_u32 s43, s43, {WS_ZP-WS_KVP}")
    e(f"buffer_load_dwordx4 {vr(zp,4)}, v{t1}, {sr(SK,4)}, s43 offen")
    e(f"buffer_load_dwordx4 {vr(zp+4,4)}, v{t1}, {sr(SK,4)}, s43 offen offset:16")
    e(f"v_add_u32 v{t2}, s42, v{i}")
    e(f"v_lshlrev_b32 v{t1}, 11, v{t2}"); e(f"v_lshl_add_u32 v{t1}, v{g}, 4, v{t1}")
    e("s_lshl_b32 s43, s41, 6")
    for m in range(16):
        e(f"buffer_load_dwordx4 {vr(ph[m],4)}, v{t1}, {sr(SQ,4)}, s43 offen")
        if m < 15: e("s_add_u32 s43, s43, 32768")
    e(f"s_mov_b32 s43, {LDA4}"); e(f"v_lshlrev_b32 v{t1}, 3, v{g}")
    e(f"v_mad_u32_u24 v{t2}, v{t2}, s43, v{t1}")
    e("s_waitcnt vmcnt(16)")
    for st in (8, 4, 2, 1):
        for rb in range(st):
            for r in range(8): e(f"v_add_f32 v{kvp[rb]+r}, v{kvp[rb]+r}, v{kvp[rb+st]+r}")
    for st in (8, 4, 2, 1):
        for r in range(8): e(f"v_add_f32_dpp v{zp+r}, v{zp+r}, v{zp+r} row_ror:{st} row_mask:0xf bank_mask:0xf")
    for r in range(4):
        e(f"v_cvt_pk_bf16_f32 v{akv+r}, v{kvp[0]+2*r}, v{kvp[0]+2*r+1}")
        e(f"v_cvt_pk_bf16_f32 v{az+r}, v{zp+2*r}, v{zp+2*r+1}")
    e("s_lshl_b32 s43, s41, 5")
    for m in range(16):
        e(f"s_waitcnt vmcnt({15-m})" if m else "s_waitcnt vmcnt(15)")
        n = kvp[m]
        e(f"v_mfma_f32_16x16x32_bf16 {vr(n,4)}, {vr(akv,4)}, {vr(ph[m],4)}, 0")
        e(f"v_mfma_f32_16x16x32_bf16 {vr(n+4,4)}, {vr(az,4)}, {vr(ph[m],4)}, 0")
    e("s_nop 7")
    for m in range(16):
        n = kvp[m]
        e(f"v_add_f32 v{n+4}, {f32(1e-6)}, v{n+4}"); e(f"v_rcp_f32 v{n+4}, v{n+4}"); e("s_nop 0")
        for r in range(4): e(f"v_mul_f32 v{n+r}, v{n+4}, v{n+r}")
        e(f"v_cvt_pk_bf16_f32 v{n}, v{n}, v{n+1}"); e(f"v_cvt_pk_bf16_f32 v{n+1}, v{n+2}, v{n+3}")
        e(f"buffer_store_dwordx2 {vr(n,2)}, v{t2}, {sr(SA,4)}, s43 offen")
        if m < 15: e(f"s_add_u32 s43, s43, {16*LDA4}")
    e("s_endpgm")
    return va.n

def k2():
    lab("k2_kernel")
    e("s_cmp_ge_u32 s2, 192"); e("s_cbranch_scc1 L_k2_end")
    e("s_load_dwordx2 s[12:13], s[0:1], 88")
    e("s_cmp_ge_u32 s2, 64"); e("s_cbranch_scc1 L_k2_ln")
    e("s_waitcnt lgkmcnt(0)")
    n1 = ojob(2, "k2")
    lab("L_k2_ln")
    va = Alloc(1)
    tl, fr, t0, t1 = [va() for _ in range(4)]
    stt = [va(16, 4) for _ in range(4)]
    d = [va(4, 4) for _ in range(6)]
    ad = [va() for _ in range(6)]
    u = [va() for _ in range(8)]
    SS, SI, SO = 16, 20, 24
    e("s_sub_u32 s40, s2, 64"); e("s_and_b32 s41, s40, 7"); e("s_lshr_b32 s42, s40, 3")
    e(f"v_and_b32 v{tl}, 31, v0"); e(f"v_lshrrev_b32 v{fr}, 5, v0")
    e("s_waitcnt lgkmcnt(0)")
    srd(SS, 12, 65536, WS_STATS); srd(SI, 12, 688*4096, WS_Z2T); srd(SO, 12, 688*4096, WS_Z2NT)
    e(f"v_lshlrev_b32 v{t0}, 6, v{tl}"); e("s_lshl_b32 s43, s41, 11")
    for z in range(4):
        for q in range(4): e(f"buffer_load_dwordx4 {vr(stt[z]+4*q,4)}, v{t0}, {sr(SS,4)}, s43 offen offset:{16*q}")
        e("s_add_u32 s43, s43, 16384")
    e("s_mul_i32 s42, s42, 43"); e(f"v_add_u32 v{t0}, s42, v{fr}"); e(f"v_lshlrev_b32 v{t0}, 12, v{t0}")
    e(f"v_lshl_add_u32 v{t0}, v{tl}, 4, v{t0}"); e("s_lshl_b32 s43, s41, 9")
    for it in range(6): e(f"v_add_u32 v{ad[it]}, {8*4096*it}, v{t0}")
    e(f"v_cmp_gt_u32 vcc, 3, v{fr}"); e(f"v_mov_b32 v{t1}, 0x7f000000"); e("s_nop 0")
    e(f"v_cndmask_b32 v{ad[5]}, v{t1}, v{ad[5]}, vcc")
    for it in range(6): e(f"buffer_load_dwordx4 {vr(d[it],4)}, v{ad[it]}, {sr(SI,4)}, s43 offen")
    e("s_waitcnt vmcnt(6)")
    e(f"s_mov_b32 s44, {f32(1/688)}")
    for r in range(16):
        e(f"v_add_f32 v{stt[0]+r}, v{stt[0]+r}, v{stt[1]+r}"); e(f"v_add_f32 v{stt[2]+r}, v{stt[2]+r}, v{stt[3]+r}")
        e(f"v_add_f32 v{stt[0]+r}, v{stt[0]+r}, v{stt[2]+r}"); e(f"v_mul_f32 v{stt[0]+r}, s44, v{stt[0]+r}")
    for k in range(8):
        a = stt[0] + 2*k
        e(f"v_fma_f32 v{a+1}, -v{a}, v{a}, v{a+1}"); e(f"v_max_f32 v{a+1}, 0, v{a+1}")
        e(f"v_add_f32 v{a+1}, {f32(1e-5)}, v{a+1}"); e(f"v_rsq_f32 v{a+1}, v{a+1}"); e("s_nop 0")
        e(f"v_mul_f32 v{a}, v{a}, v{a+1}")
    for it in range(6):
        e(f"s_waitcnt vmcnt({5})")
        for q in range(4):
            e(f"v_lshlrev_b32 v{u[2*q]}, 16, v{d[it]+q}"); e(f"v_and_b32 v{u[2*q+1]}, 0xffff0000, v{d[it]+q}")
        for k in range(8): e(f"v_fma_f32 v{u[k]}, v{u[k]}, v{stt[0]+2*k+1}, -v{stt[0]+2*k}")
        for q in range(4): e(f"v_cvt_pk_bf16_f32 v{d[it]+q}, v{u[2*q]}, v{u[2*q+1]}")
        e(f"buffer_store_dwordx4 {vr(d[it],4)}, v{ad[it]}, {sr(SO,4)}, s43 offen")
    lab("L_k2_end")
    e("s_endpgm")
    return max(n1, va.n), 0

def tilemap(sRow, sCT):
    e("s_and_b32 s3, s2, 7"); e("s_lshl_b32 s3, s3, 2"); e(f"s_lshr_b32 s{sRow}, s2, 6"); e(f"s_add_u32 s{sRow}, s{sRow}, s3")
    e(f"s_lshl_b32 s{sRow}, s{sRow}, 6"); e(f"s_bfe_u32 s{sCT}, s2, 0x30003")

def k3(S=6):
    va, sa = Alloc(1), Alloc(40)
    G = Gemm("k3", va, sa, 64, 'dir', 96, S, 32, 2, 3)
    z1 = [[va(2, 2) for _ in range(3)] for _ in range(2)]
    bs = [va() for _ in range(2)]; ua = [va() for _ in range(2)]
    sRow, sCT, sCol, sM, sN = [sa() for _ in range(5)]
    SA, SB, SZ, SBS, SO = 16, 20, 24, 28, 32
    lab("k3_kernel")
    e("s_cmp_ge_u32 s2, 256"); e("s_cbranch_scc1 L_k3_end")
    e("s_load_dwordx2 s[4:5], s[0:1], 48"); e("s_load_dwordx2 s[6:7], s[0:1], 56"); e("s_load_dwordx2 s[12:13], s[0:1], 88")
    G.setup_lane()
    tilemap(sRow, sCT)
    e(f"s_mul_i32 s{sCol}, s{sCT}, 96"); e(f"s_mul_i32 s3, s{sCT}, 80"); e("s_add_u32 s3, s3, 64")
    e(f"s_min_u32 s{sCol}, s{sCol}, s3")
    e(f"s_and_b32 s{sM}, s{G.sW}, 1"); e(f"s_lshl_b32 s{sM}, s{sM}, 5")
    e(f"s_lshr_b32 s{sN}, s{G.sW}, 1"); e(f"s_mul_i32 s{sN}, s{sN}, 48")
    e("s_waitcnt lgkmcnt(0)")
    srd(SA, 4, 2048*4096); srd(SB, 12, 688*4096, WS_Z2NT); srd(SZ, 12, 2048*LDZ1, WS_Z1); srd(SBS, 6, 4096); srd(SO, 12, 2048*LDA4, WS_A4)
    e(f"s_add_u32 s3, s{sRow}, s{sM}"); e(f"v_add_u32 v{G.t0}, s3, v{G.i}")
    e(f"v_lshlrev_b32 v{G.t1}, 1, v{G.t0}")
    e(f"buffer_load_ushort v{bs[0]}, v{G.t1}, {sr(SBS,4)}, 0 offen"); e(f"buffer_load_ushort v{bs[1]}, v{G.t1}, {sr(SBS,4)}, 0 offen offset:32")
    e(f"s_add_u32 s3, s{sCol}, s{sN}"); e("s_lshl_b32 s3, s3, 1")
    e(f"v_lshlrev_b32 v{G.t1}, 3, v{G.g}"); e(f"v_add_u32 v{G.t1}, s3, v{G.t1}")
    e(f"s_mov_b32 s3, {LDZ1}"); e(f"v_mad_u32_u24 v{G.t2}, v{G.t0}, s3, v{G.t1}")
    e(f"s_mov_b32 s3, {LDA4}"); e(f"v_mad_u32_u24 v{ua[0]}, v{G.t0}, s3, v{G.t1}"); e(f"v_add_u32 v{ua[1]}, {16*LDA4}, v{ua[0]}")
    e(f"s_mov_b32 s3, {16*LDZ1}")
    for t in range(3):
        e(f"buffer_load_dwordx2 {vr(z1[0][t],2)}, v{G.t2}, {sr(SZ,4)}, 0 offen offset:{32*t}")
        e(f"buffer_load_dwordx2 {vr(z1[1][t],2)}, v{G.t2}, {sr(SZ,4)}, s3 offen offset:{32*t}")
    G.setup_dir_dma(G.vA, 4096, sRow)
    G.setup_dir_dma(G.vB, 4096, sCol)
    G.setup_reads([sM], sN, 0)
    e(f"s_mov_b32 s{G.sKa}, 0")
    G.sKb = G.sKa
    def advance():
        e(f"s_add_u32 s{G.sKa}, s{G.sKa}, 128")
        e(f"s_cmp_lt_u32 s{G.sCnt}, {G.nst}")
        e(f"s_cselect_b32 s{SA+2}, s{SA+2}, 0"); e(f"s_cselect_b32 s{SB+2}, s{SB+2}, 0")
    G.run(SA, SB, advance)
    e(f"s_add_u32 s3, s{sCol}, s{sN}"); e("s_cmp_eq_u32 s3, 672"); e("s_cbranch_scc0 L_k3_np")
    for m in range(2): e(f"v_mov_b32 v{z1[m][1]}, 0"); e(f"v_mov_b32 v{z1[m][1]+1}, 0")
    lab("L_k3_np")
    for m in range(2): e(f"v_lshlrev_b32 v{bs[m]}, 16, v{bs[m]}")
    T = [G.t0, G.t1, G.t2, G.t3]
    for t in range(3):
        if t == 2:
            e(f"s_lshr_b32 s3, s{sCT}, 2"); e(f"s_lshr_b32 s{G.sT}, s{G.sW}, 1"); e(f"s_and_b32 s3, s3, s{G.sT}")
            e("s_cbranch_scc1 L_k3_end")
        for m in range(2):
            a = G.acc[m][t]; z = z1[m][t]
            e(f"v_lshlrev_b32 v{T[0]}, 16, v{z}"); e(f"v_and_b32 v{T[1]}, 0xffff0000, v{z}")
            e(f"v_lshlrev_b32 v{T[2]}, 16, v{z+1}"); e(f"v_and_b32 v{T[3]}, 0xffff0000, v{z+1}")
            for r in range(4): e(f"v_add_f32 v{a+r}, v{bs[m]}, v{a+r}")
            for r in range(4): e(f"v_mul_f32 v{a+r}, v{T[r]}, v{a+r}")
            e(f"v_cvt_pk_bf16_f32 v{a}, v{a}, v{a+1}"); e(f"v_cvt_pk_bf16_f32 v{a+1}, v{a+2}, v{a+3}")
            e(f"buffer_store_dwordx2 {vr(a,2)}, v{ua[m]}, {sr(SO,4)}, 0 offen offset:{1024+32*t}")
    lab("L_k3_end")
    e("s_endpgm")
    return va.n, G.stage * G.S

def k4(S=6):
    va, sa = Alloc(1), Alloc(40)
    G = Gemm("k4", va, sa, 64, 'tr', 128, S, 19, 2, 2)
    xr = [[va(2, 2) for _ in range(2)] for _ in range(2)]
    oa = va()
    sRow, sCT, sM, sQ, sLd, sSeg, sColB = [sa() for _ in range(7)]
    SA, SB, SX, SO = 16, 20, 24, 28
    lab("k4_kernel")
    e("s_cmp_ge_u32 s2, 256"); e("s_cbranch_scc1 L_k4_end")
    e("s_load_dwordx2 s[4:5], s[0:1], 0"); e("s_load_dwordx2 s[6:7], s[0:1], 24"); e("s_load_dwordx2 s[8:9], s[0:1], 64")
    e("s_load_dwordx2 s[10:11], s[0:1], 72"); e("s_load_dwordx2 s[12:13], s[0:1], 88")
    G.setup_lane()
    tilemap(sRow, sCT)
    e(f"s_and_b32 s{sM}, s{G.sW}, 1"); e(f"s_lshl_b32 s{sM}, s{sM}, 5")
    e(f"s_and_b32 s{sQ}, s{G.sW}, 2")
    e(f"s_mov_b32 s{sLd}, 1024"); e(f"s_mov_b32 s{sSeg}, 0"); e(f"s_lshl_b32 s{sColB}, s{sCT}, 7")
    e("s_waitcnt lgkmcnt(0)")
    srd(SA, 12, 2048*LDA4, WS_A4); srd(SB, 6, 512*1024); srd(SX, 4, 2048*1024); srd(SO, 10, 2048*1024)
    e(f"s_add_u32 s3, s{sRow}, s{sM}"); e(f"v_add_u32 v{G.t0}, s3, v{G.i}"); e(f"v_lshlrev_b32 v{G.t0}, 10, v{G.t0}")
    e(f"s_lshl_b32 s3, s{sQ}, 5"); e(f"s_add_u32 s3, s3, s{sColB}")
    e(f"v_lshl_add_u32 v{G.t0}, v{G.g}, 3, v{G.t0}"); e(f"v_add_u32 v{oa}, s3, v{G.t0}")
    e("s_mov_b32 s3, 16384")
    for t in range(2):
        e(f"buffer_load_dwordx2 {vr(xr[0][t],2)}, v{oa}, {sr(SX,4)}, 0 offen offset:{32*t}")
        e(f"buffer_load_dwordx2 {vr(xr[1][t],2)}, v{oa}, {sr(SX,4)}, s3 offen offset:{32*t}")
    G.setup_dir_dma(G.vA, LDA4, sRow)
    G.setup_tr_dma(sLd, sSeg, sColB)
    G.setup_reads([sM], sQ, 1)
    e(f"s_mov_b32 s{G.sKa}, 0"); e(f"s_mov_b32 s{G.sKb}, 0")
    def advance():
        e(f"s_add_u32 s{G.sKa}, s{G.sKa}, 128"); e(f"s_add_u32 s{G.sKb}, s{G.sKb}, 65536")
        e(f"s_cmp_eq_u32 s{G.sCnt}, 8")
        e(f"s_cselect_b32 s{SB}, s8, s{SB}"); e(f"s_cselect_b32 s{SB+1}, s9, s{SB+1}")
        e(f"s_cselect_b32 s{SB+2}, {688*1024}, s{SB+2}"); e(f"s_cselect_b32 s{G.sKb}, 0, s{G.sKb}")
        e(f"s_cmp_lt_u32 s{G.sCnt}, {G.nst}")
        e(f"s_cselect_b32 s{SA+2}, s{SA+2}, 0")
    G.run(SA, SB, advance)
    T = [G.t0, G.t1, G.t2, G.t3]
    for t in range(2):
        for m in range(2):
            a = G.acc[m][t]; z = xr[m][t]
            e(f"v_lshlrev_b32 v{T[0]}, 16, v{z}"); e(f"v_and_b32 v{T[1]}, 0xffff0000, v{z}")
            e(f"v_lshlrev_b32 v{T[2]}, 16, v{z+1}"); e(f"v_and_b32 v{T[3]}, 0xffff0000, v{z+1}")
            for r in range(4): e(f"v_add_f32 v{a+r}, v{T[r]}, v{a+r}")
            e(f"v_cvt_pk_bf16_f32 v{a}, v{a}, v{a+1}"); e(f"v_cvt_pk_bf16_f32 v{a+1}, v{a+2}, v{a+3}")
            e(f"buffer_store_dwordx2 {vr(a,2)}, v{oa}, {sr(SO,4)}, {'s3' if m else '0'} offen offset:{32*t}")
    lab("L_k4_end")
    e("s_endpgm")
    return va.n, G.stage * G.S
```

```python
import sys, os
sys.path.insert(0, os.path.dirname(__file__))
import core
from core import out
import k1, k234
NAME = "parallel_sum__linear_kernel_hedgehog__mixer_gmlp__prompt"
def build(path, kernels):
    del out[:]
    info = []
    for nm, fn, grid in kernels:
        out.append(f".globl {nm}_kernel\n.p2align 8\n.type {nm}_kernel,@function")
        nv, lds = fn()
        info.append((nm, nv, lds, grid))
    hdr = open(f"cdna_kernels/{NAME}.s.ref").read().split("; Override")[0]
    s = hdr
    for nm, nv, lds, grid in info:
        s += f"; @launch kernel={nm}_kernel grid=({grid},1,1) block=(256,1,1) lds={lds}\n"
    s += '.amdgcn_target "amdgcn-amd-amdhsa--gfx950"\n.text\n' + "\n".join(out) + '\n.section .rodata,"a"\n'
    for nm, nv, lds, grid in info:
        nv4 = (nv + 7) // 8 * 8
        assert nv4 <= 256, (nm, nv)
        s += f""".p2align 6
.amdhsa_kernel {nm}_kernel
  .amdhsa_next_free_vgpr {nv4}
  .amdhsa_next_free_sgpr 102
  .amdhsa_accum_offset {nv4}
  .amdhsa_group_segment_fixed_size 0
  .amdhsa_kernarg_size 96
  .amdhsa_user_sgpr_count 2
  .amdhsa_user_sgpr_kernarg_segment_ptr 1
  .amdhsa_system_sgpr_workgroup_id_x 1
.end_amdhsa_kernel
"""
    open(path, "w").write(s)
    print(info)
if __name__ == "__main__":
    build(f"cdna_kernels/{NAME}.s", [("k1", k1.k1, 256), ("k2", k234.k2, 192), ("k3", k234.k3, 256), ("k4", k234.k4, 256)])
```

```python
out = []
def e(s): out.append("    " + s)
def lab(s): out.append(s + ":")
def vr(b, n=1): return f"v{b}" if n == 1 else f"v[{b}:{b+n-1}]"
def sr(b, n=1): return f"s{b}" if n == 1 else f"s[{b}:{b+n-1}]"

class Alloc:
    def __init__(self, start): self.n = start
    def __call__(self, cnt=1, al=1):
        self.n = (self.n + al - 1) // al * al
        b = self.n; self.n += cnt
        return b

MB = 1 << 20
WS_PHIQ, WS_Z1, WS_Z2T, WS_Z2NT, WS_STATS, WS_KVP, WS_ZP, WS_A4 = 0, 4*MB, 8*MB, 12*MB, 16*MB, 17*MB, 18*MB, 20*MB
LDZ1 = 1408
LDA4 = 2432

def srd(d, ptr, nbytes, off=0):
    if off:
        e(f"s_add_u32 s{d}, s{ptr}, {off}")
        e(f"s_addc_u32 s{d+1}, s{ptr+1}, 0")
    else:
        e(f"s_mov_b32 s{d}, s{ptr}")
        e(f"s_mov_b32 s{d+1}, s{ptr+1}")
    e(f"s_mov_b32 s{d+2}, {nbytes}")
    e(f"s_mov_b32 s{d+3}, 0x00020000")

def xreduce(ops, regs, tmps):
    for sw in ("v_permlane32_swap_b32", "v_permlane16_swap_b32"):
        for r, t in zip(regs, tmps): e(f"v_mov_b32 v{t}, v{r}")
        if len(regs) < 3: e("s_nop 1")
        for r, t in zip(regs, tmps): e(f"{sw} v{r}, v{t}")
        e("s_nop 0")
        for o, r, t in zip(ops, regs, tmps): e(f"{o} v{r}, v{r}, v{t}")

class Gemm:
    def __init__(s, name, va, sa, MT, bmode, NB, S, nst, nmt, nnt, NC=4, rot=False):
        s.name, s.MT, s.bmode, s.NB, s.S, s.nst, s.nmt, s.nnt, s.rot, s.NC = name, MT, bmode, NB, S, nst, nmt, nnt, rot, NC
        s.abytes = MT * 128
        s.bbytes = NB * 128 if bmode == 'dir' else 64 * NB
        s.stage = s.abytes + s.bbytes
        s.nA, s.nB = s.abytes // 4096, s.bbytes // 4096
        s.nD = s.nA + s.nB
        s.lane, s.g, s.i = va(), va(), va()
        s.t0, s.t1, s.t2, s.t3 = va(), va(), va(), va()
        s.acc = [[va(4, 4) for _ in range(nnt)] for _ in range(nmt)]
        s.vA = [s.acc[0][0] + k for k in range(s.nA)]
        s.vB = [s.acc[0][0] + s.nA + k for k in range(s.nB)]
        s.sW, s.sSlot, s.sSlotW, s.sKa, s.sKb, s.sCnt, s.sT = sa(), sa(), sa(), sa(), sa(), sa(), sa()
    def alloc_tail(s, va):
        s.npA = 4 if s.rot else 1
        s.fr0 = va(0, 4)
        s.fa = [[va(4, 4) for _ in range(s.nmt)] for _ in range(2)]
        s.fb = [[va(4, 4) for _ in range(s.nnt)] for _ in range(2)]
        s.aab = [[va() for _ in range(s.npA)] for _ in range(2)]
        s.aac = [[va() for _ in range(s.npA)] for _ in range(2)]
        nb = s.nnt if s.bmode == 'tr' else 2
        s.bab = [va() for _ in range(nb)]
        s.bac = [va() for _ in range(nb)]
        s.frn = va.n - s.fr0

    def setup_lane(s):
        e(f"v_and_b32 v{s.lane}, 63, v0")
        e(f"v_lshrrev_b32 v{s.t0}, 6, v0")
        e(f"v_lshrrev_b32 v{s.g}, 4, v{s.lane}")
        e(f"v_readfirstlane_b32 s{s.sW}, v{s.t0}")
        e(f"v_and_b32 v{s.i}, 15, v{s.lane}")

    def setup_dir_dma(s, regs, ld, sRowBase):
        t0, t1, t2 = s.t0, s.t1, s.t2
        e(f"s_and_b32 s{s.sT}, s{s.sW}, 1")
        e(f"s_lshl_b32 s{s.sT}, s{s.sT}, 2")
        e(f"v_add_u32 v{t0}, s{s.sT}, v{s.g}")
        e(f"v_and_b32 v{t1}, 7, v{s.lane}")
        e(f"v_xor_b32 v{t0}, v{t0}, v{t1}")
        e(f"v_lshlrev_b32 v{t0}, 4, v{t0}")
        e(f"s_lshl_b32 s{s.sT}, s{s.sW}, 3")
        e(f"s_add_u32 s{s.sT}, s{s.sT}, s{sRowBase}")
        e(f"v_lshrrev_b32 v{t1}, 3, v{s.lane}")
        e(f"v_add_u32 v{t1}, s{s.sT}, v{t1}")
        e(f"s_mov_b32 s{s.sT}, {ld}")
        e(f"v_mad_u32_u24 v{regs[0]}, v{t1}, s{s.sT}, v{t0}")
        for k in range(1, len(regs)):
            e(f"v_add_u32 v{regs[k]}, {32*ld*k}, v{regs[0]}")

    def setup_tr_dma(s, sLd, sSeg, sColB):
        cpr = s.NB // 16
        t0, t1, t2, t3 = s.t0, s.t1, s.t2, s.t3
        for k in range(s.nB):
            e(f"s_lshl_b32 s{s.sT}, s{s.sW}, 6")
            e(f"s_add_u32 s{s.sT}, s{s.sT}, {256*k}")
            e(f"v_add_u32 v{t0}, s{s.sT}, v{s.lane}")
            if cpr == 24:
                e(f"v_mul_u32_u24 v{t1}, 2731, v{t0}")
                e(f"v_lshrrev_b32 v{t1}, 16, v{t1}")
                e(f"v_mul_u32_u24 v{t2}, 24, v{t1}")
                e(f"v_sub_u32 v{t0}, v{t0}, v{t2}")
            else:
                e(f"v_lshrrev_b32 v{t1}, 3, v{t0}")
                e(f"v_and_b32 v{t0}, 7, v{t0}")
            e(f"v_and_b32 v{t2}, 2, v{t1}")
            e(f"v_lshrrev_b32 v{t3}, 1, v{t1}")
            e(f"v_and_b32 v{t3}, 4, v{t3}")
            e(f"v_or_b32 v{t2}, v{t2}, v{t3}")
            e(f"v_xor_b32 v{t0}, v{t0}, v{t2}")
            e(f"v_lshrrev_b32 v{t2}, 3, v{t0}")
            e(f"v_mul_lo_u32 v{t2}, v{t2}, s{sSeg}")
            e(f"v_lshl_add_u32 v{t0}, v{t0}, 4, v{t2}")
            e(f"v_mul_lo_u32 v{t1}, v{t1}, s{sLd}")
            e(f"v_add3_u32 v{s.vB[k]}, v{t0}, v{t1}, s{sColB}")

    def setup_reads(s, sMrow, sNq, qstep):
        t0, t1, t2 = s.t0, s.t1, s.t2
        e(f"v_lshrrev_b32 v{t0}, 1, v{s.i}")
        e(f"v_xor_b32 v{t0}, v{t0}, v{s.g}")
        e(f"v_lshlrev_b32 v{t0}, 4, v{t0}")
        e(f"v_lshl_add_u32 v{t0}, v{s.i}, 7, v{t0}")
        e(f"v_xor_b32 v{t1}, 64, v{t0}")
        for p in range(s.npA):
            e(f"s_lshl_b32 s{s.sT}, s{sMrow[p]}, 7")
            e(f"v_add_u32 v{s.aab[0][p]}, s{s.sT}, v{t0}")
            e(f"v_add_u32 v{s.aab[1][p]}, s{s.sT}, v{t1}")
        if s.bmode == 'dir':
            e(f"s_lshl_b32 s{s.sT}, s{sNq}, 7")
            e(f"s_add_u32 s{s.sT}, s{s.sT}, {s.abytes}")
            e(f"v_add_u32 v{s.bab[0]}, s{s.sT}, v{t0}")
            e(f"v_add_u32 v{s.bab[1]}, s{s.sT}, v{t1}")
        else:
            e(f"v_lshrrev_b32 v{t0}, 2, v{s.i}")
            e(f"v_lshl_add_u32 v{t0}, v{s.g}, 3, v{t0}")
            e(f"v_mul_u32_u24 v{t0}, {s.NB}, v{t0}")
            e(f"v_and_b32 v{t1}, 3, v{s.i}")
            e(f"v_lshl_add_u32 v{t0}, v{t1}, 3, v{t0}")
            e(f"v_add_u32 v{t0}, {s.abytes}, v{t0}")
            e(f"v_lshrrev_b32 v{t1}, 3, v{s.i}")
            e(f"v_and_b32 v{t2}, 1, v{s.g}")
            e(f"v_lshl_or_b32 v{t1}, v{t2}, 1, v{t1}")
            for t in range(s.nnt):
                e(f"s_add_u32 s{s.sT}, s{sNq}, {qstep*t}")
                e(f"v_xor_b32 v{t2}, s{s.sT}, v{t1}")
                e(f"v_lshl_add_u32 v{s.bab[t]}, v{t2}, 5, v{t0}")

    def dma(s, srdA, srdB):
        for k in range(s.nA):
            e(f"s_add_u32 m0, s{s.sSlotW}, {4096*k}")
            e("s_nop 0")
            e(f"buffer_load_dwordx4 v{s.vA[k]}, {sr(srdA,4)}, s{s.sKa} offen lds")
        for k in range(s.nB):
            e(f"s_add_u32 m0, s{s.sSlotW}, {s.abytes + 4096*k}")
            e("s_nop 0")
            e(f"buffer_load_dwordx4 v{s.vB[k]}, {sr(srdB,4)}, s{s.sKb} offen lds")

    def cur_addrs(s):
        for hh in range(2):
            for p in range(s.npA): e(f"v_add_u32 v{s.aac[hh][p]}, s{s.sSlot}, v{s.aab[hh][p]}")
        for a, b in zip(s.bac, s.bab): e(f"v_add_u32 v{a}, s{s.sSlot}, v{b}")

    def reads(s, hh):
        for t in range(s.nnt):
            if s.bmode == 'dir':
                e(f"ds_read_b128 {vr(s.fb[hh][t],4)}, v{s.bac[hh]} offset:{2048*t}")
            else:
                e(f"ds_read_b64_tr_b16 {vr(s.fb[hh][t],2)}, v{s.bac[t]} offset:{32*hh*s.NB}")
                e(f"ds_read_b64_tr_b16 {vr(s.fb[hh][t]+2,2)}, v{s.bac[t]} offset:{(32*hh+4)*s.NB}")
        for m in range(s.nmt):
            if s.rot: e(f"ds_read_b128 {vr(s.fa[hh][m],4)}, v{s.aac[hh][m]}")
            else: e(f"ds_read_b128 {vr(s.fa[hh][m],4)}, v{s.aac[hh][0]} offset:{2048*m}")

    def capture(s, fn):
        n = len(out); fn(); x = out[n:]; del out[n:]
        return x

    def mfmas(s, hh, extra=None, fill=()):
        ex = list(extra(hh)) if extra else []
        fill = list(fill)
        nm = s.nmt * s.nnt
        per = (len(fill) + nm - 1) // nm
        for m in range(s.nmt):
            for t in range(s.nnt):
                e(f"v_mfma_f32_16x16x32_bf16 {vr(s.acc[m][t],4)}, {vr(s.fb[hh][t],4)}, {vr(s.fa[hh][m],4)}, {vr(s.acc[m][t],4)}")
                for _ in range(per):
                    if fill: out.append(fill.pop(0))
        for x in ex: e(x)

    def loader(s, srdA, srdB, advance):
        e(f"s_lshl_b32 s{s.sSlotW}, s{s.sW}, 10")
        e(f"s_add_u32 s{s.sSlot}, s{s.sSlotW}, {s.stage*s.S}")
        e(f"s_mov_b32 s{s.sCnt}, 0")
        def step():
            s.dma(srdA, srdB)
            e(f"s_add_u32 s{s.sCnt}, s{s.sCnt}, 1")
            advance()
            e(f"s_add_u32 s{s.sSlotW}, s{s.sSlotW}, {s.stage}")
            e(f"s_cmp_eq_u32 s{s.sSlotW}, s{s.sSlot}")
            e(f"s_cselect_b32 s{s.sT}, {s.stage*s.S}, 0")
            e(f"s_sub_u32 s{s.sSlotW}, s{s.sSlotW}, s{s.sT}")
        lab(f"L_{s.name}_lpro")
        step()
        e(f"s_cmp_lt_u32 s{s.sCnt}, {s.S}"); e(f"s_cbranch_scc1 L_{s.name}_lpro")
        e(f"s_waitcnt vmcnt({(s.S-1)*s.nD})"); e("s_barrier")
        lab(f"L_{s.name}_lloop")
        e(f"s_waitcnt vmcnt({(s.S-2)*s.nD})"); e("s_barrier")
        step()
        e(f"s_cmp_lt_u32 s{s.sCnt}, {s.nst}"); e(f"s_cbranch_scc1 L_{s.name}_lloop")
        for i in range(s.nst - s.S, s.nst):
            e(f"s_waitcnt vmcnt({max(0, s.nst-1-(i+1))*s.nD})"); e("s_barrier")
        e("s_endpgm")

    def run(s, extra=None):
        stamp()
        for m in range(s.nmt):
            for t in range(s.nnt):
                for r in range(4): e(f"v_mov_b32 v{s.acc[m][t]+r}, 0")
        e(f"s_mov_b32 s{s.sCnt}, 0")
        e(f"s_mov_b32 s{s.sSlot}, 0")
        s.cur_addrs()
        e("s_barrier")
        stamp()
        s.reads(0)
        lab(f"L_{s.name}_loop")
        e("s_waitcnt lgkmcnt(0)")
        def upd():
            s.reads(1)
            e(f"s_add_u32 s{s.sSlot}, s{s.sSlot}, {s.stage}")
            e(f"s_cmp_eq_u32 s{s.sSlot}, {s.stage*s.S}")
            e(f"s_cselect_b32 s{s.sSlot}, 0, s{s.sSlot}")
            e(f"s_add_u32 s{s.sCnt}, s{s.sCnt}, 1")
            s.cur_addrs()
        s.mfmas(0, extra, s.capture(upd))
        e("s_waitcnt lgkmcnt(0)")
        e("s_barrier")
        s.mfmas(1, extra, s.capture(lambda: s.reads(0)))
        e(f"s_cmp_lt_u32 s{s.sCnt}, {s.nst}")
        e(f"s_cbranch_scc1 L_{s.name}_loop")
        e("s_waitcnt lgkmcnt(0)")
        e("s_nop 7")
        stamp()

STAMP = False
_nst = [0]
def stamp_reset(): _nst[0] = 0
def stamp():
    if not STAMP: return
    e("s_memtime s[98:99]"); e("s_waitcnt lgkmcnt(0)"); e(f"s_mov_b32 s{80+_nst[0]}, s98"); _nst[0] += 1
def stamp_flush(wg, base, n=None):
    if not STAMP: return
    import random
    L = f"L_st{random.randrange(1<<30)}"
    stamp()
    e(f"s_cmp_lg_u32 s2, {wg}"); e(f"s_cbranch_scc1 {L}")
    e("s_load_dwordx2 s[96:97], s[0:1], 80"); e("s_waitcnt lgkmcnt(0)")
    e("s_mov_b32 s92, s96"); e("s_mov_b32 s93, s97"); e("s_mov_b32 s94, 256"); e("s_mov_b32 s95, 0x00020000")
    e("v_cmp_eq_u32 vcc, 0, v0"); e("s_and_saveexec_b64 s[96:97], vcc"); e("v_mov_b32 v1, 0")
    for k in range(_nst[0]):
        e(f"s_sub_u32 s98, s{80+k}, s80"); e("v_mov_b32 v2, s98")
        e(f"buffer_store_dword v2, v1, s[92:95], 0 offen offset:{4*(base+k)}")
    e("s_mov_b64 exec, s[96:97]")
    out.append(L + ":")
    _nst[0] -= 1
```

```python
from core import *
import core
L2E = 0x3fb8aa3b
import struct
def f32(x): return struct.unpack('<I', struct.pack('<f', x))[0]

def k1():
    va, sa = Alloc(1), Alloc(40)
    NM = 4
    G = Gemm("k1", va, sa, 128, 'tr', 384, 3, 8, NM, 3, NC=8, rot=True)
    LDSX = 32768
    LCS, LZS = LDSX + 1024, LDSX + 2560
    cs = [va(4, 4) for _ in range(3)]
    ones = va(4, 4)
    rs = va(4, 4); gr = va(4, 4)
    ss = [rs, gr]
    wph = va(4, 2); idm = va(2, 2)
    G.alloc_tail(va)
    sRB, sCT, sRow, sLd, sSeg, sColB, sL, sIsZ, sZi = [sa() for _ in range(9)]
    sTok = [sa() for _ in range(4)]
    sC0, sC1, sNv, sWn, sWm = sa(), sa(), sa(), sa(), sa()
    SX, SW, SP, SO, SO2 = 16, 20, 24, 28, 32
    lab("k1_kernel")
    e("s_cmp_ge_u32 s2, 256"); e("s_cbranch_scc1 L_k1_end")
    e("s_load_dwordx2 s[4:5], s[0:1], 0"); e("s_load_dwordx2 s[6:7], s[0:1], 8")
    e("s_load_dwordx2 s[8:9], s[0:1], 16"); e("s_load_dwordx2 s[10:11], s[0:1], 40")
    e("s_load_dwordx2 s[12:13], s[0:1], 88")
    core.stamp_reset(); core.stamp()
    G.setup_lane()
    e(f"s_lshr_b32 s{sRB}, s2, 4"); e(f"s_and_b32 s{sCT}, s2, 15")
    e(f"s_lshl_b32 s{sRow}, s{sRB}, 7")
    e(f"s_lshr_b32 s{sIsZ}, s{sCT}, 3")
    e(f"s_and_b32 s{sZi}, s{sCT}, 3")
    e(f"s_cmp_lt_u32 s{G.sW}, 8"); e("s_cbranch_scc1 L_k1_c")
    e(f"s_sub_u32 s{G.sW}, s{G.sW}, 8")
    e(f"s_mul_i32 s{sColB}, s{sZi}, 352")
    e(f"s_bfe_u32 s3, s{sCT}, 0x10002"); e("s_mul_i32 s3, s3, 1376")
    e(f"s_add_u32 s{sColB}, s{sColB}, s3")
    e(f"s_lshl_b32 s3, s{sCT}, 7")
    e(f"s_cmp_eq_u32 s{sIsZ}, 1")
    e(f"s_cselect_b32 s{sColB}, s{sColB}, s3")
    e(f"s_mov_b32 s{sLd}, 3072"); e(f"s_cselect_b32 s{sLd}, 2752, s{sLd}")
    e(f"s_cselect_b32 s{sSeg}, 0, 896")
    e(f"s_mov_b32 s{SW+2}, {512*3072}"); e(f"s_cselect_b32 s{SW+2}, {512*2752}, s{SW+2}"); e(f"s_mov_b32 s{SW+3}, 0x00020000")
    e("s_waitcnt lgkmcnt(0)")
    e(f"s_cselect_b32 s{SW}, s10, s6"); e(f"s_cselect_b32 s{SW+1}, s11, s7")
    srd(SX, 4, 2048*1024)
    G.setup_dir_dma(G.vA, 1024, sRow)
    G.setup_tr_dma(sLd, sSeg, sColB)
    e(f"s_mov_b32 s{G.sKa}, 0"); e(f"s_mov_b32 s{G.sKb}, 0")
    e(f"s_lshl_b32 s{sLd}, s{sLd}, 6")
    def advance():
        e(f"s_add_u32 s{G.sKa}, s{G.sKa}, 128"); e(f"s_add_u32 s{G.sKb}, s{G.sKb}, s{sLd}")
    G.loader(SX, SW, advance)
    lab("L_k1_c")
    e(f"s_and_b32 s{sWn}, s{G.sW}, 3"); e(f"s_lshr_b32 s{sWm}, s{G.sW}, 2")
    e(f"s_lshl_b32 s3, s{sWm}, 6")
    for p in range(4):
        e(f"s_add_u32 s{sTok[p]}, s{sWn}, {p}"); e(f"s_and_b32 s{sTok[p]}, s{sTok[p]}, 3")
        e(f"s_lshl_b32 s{sTok[p]}, s{sTok[p]}, 4"); e(f"s_add_u32 s{sTok[p]}, s{sTok[p]}, s3")
    G.setup_reads(sTok, sWn, 4)
    e("s_waitcnt lgkmcnt(0)")
    srd(SP, 8, 32*512)
    e(f"s_and_b32 s3, s{sCT}, 7"); e("s_lshl_b32 s3, s3, 2"); e(f"s_add_u32 s3, s3, s{sWn}"); e("s_lshl_b32 s3, s3, 9")
    e(f"v_lshlrev_b32 v{G.t0}, 7, v{G.g}"); e(f"v_lshl_add_u32 v{G.t0}, v{G.i}, 1, v{G.t0}")
    for r in range(4): e(f"buffer_load_ushort v{wph+r}, v{G.t0}, {sr(SP,4)}, s3 offen offset:{32*r}")
    for r in range(4): e(f"v_mov_b32 v{ones+r}, 0x3f803f80")
    for t in range(3):
        for r in range(4): e(f"v_mov_b32 v{cs[t]+r}, 0")
    for r in range(8): e(f"v_mov_b32 v{rs+r}, 0")
    e(f"v_lshlrev_b32 v{G.t0}, 2, v{G.g}"); e(f"v_sub_u32 v{G.t0}, v{G.i}, v{G.t0}")
    e(f"v_mov_b32 v{G.t1}, 0x3f80"); e(f"v_mov_b32 v{G.t2}, 0x3f800000")
    for q in range(2):
        e(f"v_cmp_eq_u32 vcc, {2*q}, v{G.t0}"); e("s_nop 1"); e(f"v_cndmask_b32 v{idm+q}, 0, v{G.t1}, vcc")
        e(f"v_cmp_eq_u32 vcc, {2*q+1}, v{G.t0}"); e("s_nop 1"); e(f"v_cndmask_b32 v{idm+q}, v{idm+q}, v{G.t2}, vcc")
    for r in range(4): e(f"v_cmp_eq_u32 s[{70+2*r}:{71+2*r}], {r}, v{G.t0}")
    def extra(hh):
        x = [f"v_mfma_f32_16x16x32_bf16 {vr(rs,4)}, {vr(ones,4)}, {vr(G.fa[hh][0],4)}, {vr(rs,4)}",
             f"v_mfma_f32_16x16x32_bf16 {vr(gr,4)}, {vr(G.fa[hh][0],4)}, {vr(G.fa[hh][0],4)}, {vr(gr,4)}"]
        x.append(f"s_cmp_eq_u32 s{sWm}, {hh}")
        x.append(f"s_cbranch_scc0 L_k1_cs{hh}")
        x += [f"v_mfma_f32_16x16x32_bf16 {vr(cs[t],4)}, {vr(G.fb[hh][t],4)}, {vr(ones,4)}, {vr(cs[t],4)}" for t in range(3)]
        x.append(f"L_k1_cs{hh}:")
        return x
    G.run(extra)
    ta = Alloc(G.fr0)
    tm = [ta() for _ in range(8)]
    mr = [ta(2, 2) for _ in range(NM)]
    tok = [ta() for _ in range(NM)]
    kv = [ta(4, 4) for _ in range(4)]
    e(f"s_mul_i32 s{G.sT}, s{G.sW}, 192"); e(f"s_add_u32 s{G.sT}, s{G.sT}, {LCS}")
    e(f"v_lshlrev_b32 v{tm[6]}, 4, v{G.g}"); e(f"v_add_u32 v{tm[6]}, s{G.sT}, v{tm[6]}")
    for t in range(3): e(f"ds_write_b128 v{tm[6]}, {vr(cs[t],4)} offset:{64*t}")
    e(f"v_cndmask_b32 v{gr}, 0, v{gr}, s[70:71]")
    for r in range(1, 4): e(f"v_cndmask_b32 v{gr}, v{gr}, v{gr+r}, s[{70+2*r}:{71+2*r}]")
    xreduce(["v_add_f32"], [gr], tm[:1])
    e(f"s_mov_b32 s3, {f32(1/512)}")
    e(f"v_lshlrev_b32 v{tm[4]}, 3, v{G.i}")
    e(f"s_lshl_b32 s{G.sT}, s{sTok[0]}, 3"); e(f"s_add_u32 s{G.sT}, s{G.sT}, {LDSX}")
    e(f"v_add_u32 v{tm[5]}, s{G.sT}, v{tm[4]}")
    a = mr[0]
    e(f"v_mul_f32 v{a}, s3, v{ss[0]}"); e(f"v_mul_f32 v{a+1}, s3, v{ss[1]}")
    e(f"v_fma_f32 v{a+1}, -v{a}, v{a}, v{a+1}"); e(f"v_max_f32 v{a+1}, 0, v{a+1}")
    e(f"v_add_f32 v{a+1}, {f32(1e-5)}, v{a+1}"); e(f"v_rsq_f32 v{a+1}, v{a+1}")
    e(f"s_xor_b32 s{G.sT}, s{G.sW}, 4"); e(f"s_mul_i32 s{G.sT}, s{G.sT}, 192"); e(f"s_add_u32 s{G.sT}, s{G.sT}, {LCS}")
    e(f"ds_write_b64 v{tm[5]}, {vr(a,2)}")
    e(f"v_lshlrev_b32 v{tm[6]}, 4, v{G.g}"); e(f"v_add_u32 v{tm[6]}, s{G.sT}, v{tm[6]}")
    for p in range(1, 4):
        e(f"s_lshl_b32 s{G.sT}, s{sTok[p]}, 3"); e(f"s_add_u32 s{G.sT}, s{G.sT}, {LDSX}")
        e(f"v_add_u32 v{tm[p]}, s{G.sT}, v{tm[4]}")
    e("s_waitcnt lgkmcnt(0)"); e("s_barrier")
    for t in range(3): e(f"ds_read_b128 {vr(kv[t],4)}, v{tm[6]} offset:{64*t}")
    for p in range(1, 4): e(f"ds_read_b64 {vr(mr[p],2)}, v{tm[p]}")
    for m in range(NM):
        e(f"s_add_u32 s{G.sT}, s{sTok[m]}, s{sRow}")
        e(f"v_add_u32 v{tok[m]}, s{G.sT}, v{G.i}")
    e("s_waitcnt lgkmcnt(3)")
    for t in range(3):
        for r in range(4): e(f"v_add_f32 v{cs[t]+r}, v{cs[t]+r}, v{kv[t]+r}")
    e("s_waitcnt lgkmcnt(0)")
    for m in range(NM):
        for t in range(3):
            for r in range(4):
                a = G.acc[m][t] + r
                e(f"v_fma_f32 v{a}, -v{mr[m]}, v{cs[t]+r}, v{a}")
            for r in range(4):
                a = G.acc[m][t] + r
                e(f"v_mul_f32 v{a}, v{mr[m]+1}, v{a}")
    core.stamp()
    e(f"s_cmp_eq_u32 s{sIsZ}, 1"); e("s_cbranch_scc1 L_k1_z")
    srd(SO, 12, 4*MB, WS_PHIQ); srd(SO2, 12, 2*MB, WS_KVP)
    e(f"s_mov_b32 s{sL}, {L2E}")
    for k in kv:
        for r in range(4): e(f"v_mov_b32 v{k+r}, 0")
    pk = [ta(2, 2) for _ in range(6)]
    e("s_waitcnt vmcnt(0)")
    e(f"v_lshl_or_b32 v{wph}, v{wph+1}, 16, v{wph}"); e(f"v_lshl_or_b32 v{wph+1}, v{wph+3}, 16, v{wph+2}")
    for m in range(NM):
        o = 3 * (m & 1)
        for t in range(3):
            a = G.acc[m][t]
            e(f"v_cvt_pk_bf16_f32 v{pk[o+t]}, v{a}, v{a+1}"); e(f"v_cvt_pk_bf16_f32 v{pk[o+t]+1}, v{a+2}, v{a+3}")
        e("s_nop 1")
        e(f"v_mfma_f32_16x16x16_bf16 {vr(G.acc[m][0],4)}, {vr(wph,2)}, {vr(pk[o],2)}, 0")
        e(f"v_mfma_f32_16x16x16_bf16 {vr(G.acc[m][1],4)}, {vr(wph,2)}, {vr(pk[o+1],2)}, 0")
        e(f"v_mfma_f32_16x16x16_bf16 {vr(G.acc[m][2],4)}, {vr(pk[o+2],2)}, {vr(idm,2)}, 0")
    e(f"s_and_b32 s3, s{sCT}, 7"); e("s_lshl_b32 s3, s3, 2"); e(f"s_add_u32 s3, s3, s{sWn}")
    e(f"s_lshl_b32 s{G.sT}, s3, 6")
    e(f"v_lshlrev_b32 v{tm[6]}, 4, v{G.g}"); e(f"v_add_u32 v{tm[6]}, s{G.sT}, v{tm[6]}")
    st = [ta() for _ in range(4)]
    ex = [[ta(4, 4) for _ in range(2)] for _ in range(2)]
    tr = [ta(4, 4) for _ in range(2)]
    e("s_nop 4")
    for m in range(NM):
        for j in range(2):
            a = G.acc[m][j]
            e(f"v_max3_f32 v{st[j]}, v{a}, v{a+1}, v{a+2}"); e(f"v_min3_f32 v{st[2+j]}, v{a}, v{a+1}, v{a+2}")
            e(f"v_max_f32 v{st[j]}, v{st[j]}, v{a+3}"); e(f"v_min_f32 v{st[2+j]}, v{st[2+j]}, v{a+3}")
        xreduce(["v_max_f32"]*2 + ["v_min_f32"]*2, st, tm[:4])
        for q in st: e(f"v_mul_f32 v{q}, s{sL}, v{q}")
        for j in range(2):
            a = G.acc[m][j]
            for r in range(4):
                e(f"v_fma_f32 v{ex[j][0]+r}, v{a+r}, s{sL}, -v{st[j]}")
                e(f"v_fma_f32 v{ex[j][1]+r}, -v{a+r}, s{sL}, v{st[2+j]}")
        for j in range(2):
            for sg in range(2):
                for r in range(4): e(f"v_exp_f32 v{ex[j][sg]+r}, v{ex[j][sg]+r}")
        a = G.acc[m][2]
        e(f"v_cvt_pk_bf16_f32 v{pk[4]}, v{a}, v{a+1}"); e(f"v_cvt_pk_bf16_f32 v{pk[4]+1}, v{a+2}, v{a+3}")
        for j in range(2):
            for sg in range(2):
                b = ex[j][sg]; q = st[2*sg+j]
                e(f"v_add_f32 v{q}, v{b}, v{b+1}"); e(f"v_add_f32 v{tm[4]}, v{b+2}, v{b+3}"); e(f"v_add_f32 v{q}, v{q}, v{tm[4]}")
        xreduce(["v_add_f32"]*4, st, tm[:4])
        for q in st: e(f"v_rcp_f32 v{q}, v{q}")
        e(f"v_lshl_add_u32 v{tm[7]}, v{tok[m]}, 11, v{tm[6]}")
        for j in range(2):
            for sg in range(2):
                b = ex[j][sg]; q = st[2*sg+j]
                for r in range(4): e(f"v_mul_f32 v{b+r}, v{q}, v{b+r}")
        a = G.acc[m][0]
        for sg in range(2):
            b = ex[0][sg]
            e(f"v_cvt_pk_bf16_f32 v{a+2*sg}, v{b}, v{b+1}"); e(f"v_cvt_pk_bf16_f32 v{a+2*sg+1}, v{b+2}, v{b+3}")
            b = ex[1][sg]
            e(f"v_cvt_pk_bf16_f32 v{pk[sg]}, v{b}, v{b+1}"); e(f"v_cvt_pk_bf16_f32 v{pk[sg]+1}, v{b+2}, v{b+3}")
        e(f"buffer_store_dwordx4 {vr(a,4)}, v{tm[7]}, {sr(SO,4)}, 0 offen")
        e("s_nop 0")
        for sg in range(2):
            e(f"v_mfma_f32_16x16x16_bf16 {vr(tr[sg],4)}, {vr(pk[sg],2)}, {vr(idm,2)}, 0")
        e("s_nop 7")
        for sg in range(2):
            b = tr[sg]
            e(f"v_cvt_pk_bf16_f32 v{pk[2+sg]}, v{b}, v{b+1}"); e(f"v_cvt_pk_bf16_f32 v{pk[2+sg]+1}, v{b+2}, v{b+3}")
        e("s_nop 1")
        for sg in range(2):
            e(f"v_mfma_f32_16x16x16_bf16 {vr(kv[sg],4)}, {vr(pk[2+sg],2)}, {vr(pk[4],2)}, {vr(kv[sg],4)}")
            e(f"v_mfma_f32_16x16x16_bf16 {vr(kv[2+sg],4)}, {vr(pk[2+sg],2)}, {vr(ones,2)}, {vr(kv[2+sg],4)}")
    e(f"s_lshl_b32 s{G.sT}, s{sWn}, 12"); e(f"v_lshlrev_b32 v{tm[0]}, 4, v{G.lane}"); e(f"v_add_u32 v{tm[0]}, s{G.sT}, v{tm[0]}")
    e(f"s_cmp_eq_u32 s{sWm}, 0"); e("s_cbranch_scc1 L_k1_kv0")
    e("s_nop 4")
    for q in range(4): e(f"ds_write_b128 v{tm[0]}, {vr(kv[q],4)} offset:{1024*q}")
    e("s_waitcnt lgkmcnt(0)"); e("s_barrier"); e("s_endpgm")
    lab("L_k1_kv0")
    e(f"s_lshl_b32 s{G.sT}, s{sRB}, 5"); e(f"s_add_u32 s3, s3, s{G.sT}")
    e(f"s_lshl_b32 s{G.sT}, s3, 11"); e("s_lshl_b32 s3, s3, 7"); e(f"s_add_u32 s3, s3, {WS_ZP-WS_KVP}")
    e("s_barrier")
    for q in range(4): e(f"ds_read_b128 {vr(ex[q>>1][q&1],4)}, v{tm[0]} offset:{1024*q}")
    e(f"v_lshlrev_b32 v{tm[0]}, 5, v{G.lane}"); e(f"v_lshlrev_b32 v{tm[1]}, 5, v{G.g}")
    e("s_waitcnt lgkmcnt(0)")
    for q in range(4):
        for r in range(4): e(f"v_add_f32 v{kv[q]+r}, v{kv[q]+r}, v{ex[q>>1][q&1]+r}")
    e(f"buffer_store_dwordx4 {vr(kv[0],4)}, v{tm[0]}, {sr(SO2,4)}, s{G.sT} offen")
    e(f"buffer_store_dwordx4 {vr(kv[1],4)}, v{tm[0]}, {sr(SO2,4)}, s{G.sT} offen offset:16")
    core.stamp_flush(0, 0)
    e(f"v_cmp_eq_u32 vcc, 0, v{G.i}"); e("s_and_saveexec_b64 s[36:37], vcc")
    e(f"buffer_store_dwordx4 {vr(kv[2],4)}, v{tm[1]}, {sr(SO2,4)}, s3 offen")
    e(f"buffer_store_dwordx4 {vr(kv[3],4)}, v{tm[1]}, {sr(SO2,4)}, s3 offen offset:16")
    e("s_endpgm")
    lab("L_k1_z")
    c0 = -2.0 * 0.7978845608028654 * 1.4426950408889634
    e(f"s_mov_b32 s{sC0}, {f32(c0)}"); e(f"v_mov_b32 v{tm[7]}, {f32(c0*0.044715)}")
    e(f"s_cmp_eq_u32 s{sZi}, 3"); e(f"s_cselect_b32 s{sNv}, 2, 3")
    for m in range(NM):
        for t in range(3):
            a = G.acc[m][t]
            for r in range(4): e(f"v_mul_f32 v{tm[r]}, v{a+r}, v{a+r}")
            for r in range(4): e(f"v_fma_f32 v{tm[r]}, v{tm[r]}, v{tm[7]}, s{sC0}")
            for r in range(4): e(f"v_mul_f32 v{tm[r]}, v{tm[r]}, v{a+r}")
            for r in range(4): e(f"v_exp_f32 v{tm[r]}, v{tm[r]}")
            for r in range(4): e(f"v_add_f32 v{tm[r]}, 1.0, v{tm[r]}")
            for r in range(4): e(f"v_rcp_f32 v{tm[r]}, v{tm[r]}")
            for r in range(4): e(f"v_mul_f32 v{a+r}, v{tm[r]}, v{a+r}")
    e(f"s_mul_i32 s{sColB}, s{sZi}, 176"); e(f"s_lshl_b32 s3, s{sWn}, 4"); e(f"s_add_u32 s{sColB}, s{sColB}, s3")
    e(f"s_bitcmp1_b32 s{sCT}, 2"); e("s_cbranch_scc1 L_k1_z2")
    srd(SO, 12, 2048*LDZ1, WS_Z1)
    e(f"s_lshl_b32 s3, s{sColB}, 1"); e(f"v_lshlrev_b32 v{tm[6]}, 3, v{G.g}"); e(f"v_add_u32 v{tm[6]}, s3, v{tm[6]}")
    e(f"s_mov_b32 s3, {LDZ1}")
    for m in range(NM): e(f"v_mad_u32_u24 v{tok[m]}, v{tok[m]}, s3, v{tm[6]}")
    for t in range(3):
        if t == 2: e(f"s_cmp_ge_u32 s{sWn}, s{sNv}"); e("s_cbranch_scc1 L_k1_end")
        for m in range(NM):
            a = G.acc[m][t]
            e(f"v_cvt_pk_bf16_f32 v{a}, v{a}, v{a+1}"); e(f"v_cvt_pk_bf16_f32 v{a+1}, v{a+2}, v{a+3}")
            e(f"buffer_store_dwordx2 {vr(a,2)}, v{tok[m]}, {sr(SO,4)}, 0 offen offset:{128*t}")
    e("s_endpgm")
    lab("L_k1_z2")
    srd(SO, 12, 688*4096, WS_Z2T); srd(SO2, 12, 65536, WS_STATS)
    e(f"s_cmp_lt_u32 s{sWn}, s{sNv}"); e("s_cbranch_scc1 L_k1_z2v")
    for m in range(NM):
        for r in range(4): e(f"v_mov_b32 v{G.acc[m][2]+r}, 0")
    lab("L_k1_z2v")
    for m in range(NM):
        a, b = mr[m], mr[m] + 1
        l = [G.acc[m][t] + r for t in range(3) for r in range(4)]
        e(f"v_add_f32 v{a}, v{l[0]}, v{l[1]}"); e(f"v_mul_f32 v{b}, v{l[0]}, v{l[0]}"); e(f"v_fmac_f32 v{b}, v{l[1]}, v{l[1]}")
        for x in l[2:]: e(f"v_add_f32 v{a}, v{a}, v{x}"); e(f"v_fmac_f32 v{b}, v{x}, v{x}")
    for h in range(NM//2):
        xreduce(["v_add_f32"]*4, [mr[2*h], mr[2*h]+1, mr[2*h+1], mr[2*h+1]+1], tm[:4])
    e(f"s_lshl_b32 s3, s{sWn}, 10"); e(f"s_add_u32 s3, s3, {LZS}")
    for p in range(4):
        e(f"s_lshl_b32 s{G.sT}, s{sTok[p]}, 3"); e(f"s_add_u32 s{G.sT}, s{G.sT}, s3")
        e(f"v_add_u32 v{tm[5]}, s{G.sT}, v{tm[4]}")
        e(f"ds_write_b64 v{tm[5]}, {vr(mr[p],2)}")
    for m in range(NM):
        for t in range(3):
            a = G.acc[m][t]
            e(f"v_cvt_pk_bf16_f32 v{pk[t]}, v{a}, v{a+1}"); e(f"v_cvt_pk_bf16_f32 v{pk[t]+1}, v{a+2}, v{a+3}")
        e("s_nop 1")
        for t in range(3): e(f"v_mfma_f32_16x16x16_bf16 {vr(G.acc[m][t],4)}, {vr(pk[t],2)}, {vr(idm,2)}, 0")
    e("s_waitcnt lgkmcnt(0)"); e("s_barrier")
    e(f"s_cmp_eq_u32 s{sWm}, 0"); e("s_cbranch_scc0 L_k1_z2s")
    e(f"v_lshlrev_b32 v{tm[5]}, 2, v0")
    e(f"v_add_u32 v{tm[6]}, {LZS}, v{tm[5]}")
    for w in range(4): e(f"ds_read_b32 v{tm[w]}, v{tm[6]} offset:{1024*w}")
    e(f"s_lshl_b32 s3, s{sZi}, 14"); e(f"s_lshl_b32 s{G.sT}, s{sRow}, 3"); e(f"s_add_u32 s3, s3, s{G.sT}")
    e("s_waitcnt lgkmcnt(0)")
    e(f"v_add_f32 v{tm[0]}, v{tm[0]}, v{tm[1]}"); e(f"v_add_f32 v{tm[2]}, v{tm[2]}, v{tm[3]}"); e(f"v_add_f32 v{tm[0]}, v{tm[0]}, v{tm[2]}")
    e(f"buffer_store_dword v{tm[0]}, v{tm[5]}, {sr(SO2,4)}, s3 offen")
    lab("L_k1_z2s")
    e(f"v_add_u32 v{tm[6]}, s{sColB}, v{G.i}"); e(f"v_lshlrev_b32 v{tm[6]}, 12, v{tm[6]}")
    e(f"v_lshl_add_u32 v{tm[6]}, v{G.g}, 3, v{tm[6]}")
    for p in range(4):
        e(f"s_add_u32 s{G.sT}, s{sTok[p]}, s{sRow}"); e(f"s_lshl_b32 s{G.sT}, s{G.sT}, 1")
        e(f"v_add_u32 v{tok[p]}, s{G.sT}, v{tm[6]}")
    for t in range(3):
        if t == 2: e(f"s_cmp_ge_u32 s{sWn}, s{sNv}"); e("s_cbranch_scc1 L_k1_end")
        e(f"s_mov_b32 s3, {64*4096*t}")
        for m in range(NM):
            a = G.acc[m][t]
            e(f"v_cvt_pk_bf16_f32 v{a}, v{a}, v{a+1}"); e(f"v_cvt_pk_bf16_f32 v{a+1}, v{a+2}, v{a+3}")
            e(f"buffer_store_dwordx2 {vr(a,2)}, v{tok[m]}, {sr(SO,4)}, s3 offen")
    core.stamp_flush(12, 8)
    lab("L_k1_end")
    e("s_endpgm")
    assert ta.n <= G.fr0 + G.frn, (ta.n, G.fr0 + G.frn)
    return va.n, G.stage * G.S
```

```python
from core import *
import core
from k1 import f32

def ojob(sId, pfx):
    va = Alloc(1)
    lane, g, i, t0, t1, t2 = [va() for _ in range(6)]
    kvp = [va(8, 4) for _ in range(16)]
    zp = va(8, 4); akv = va(4, 4); az = va(4, 4)
    ph = [va(4, 4) for _ in range(16)]
    SK, SQ, SA = 16, 20, 24
    srd(SK, 12, 2*MB, WS_KVP); srd(SQ, 12, 4*MB, WS_PHIQ); srd(SA, 12, 2048*LDA4, WS_A4)
    e(f"v_and_b32 v{lane}, 63, v0"); e(f"v_lshrrev_b32 v{t0}, 6, v0"); e(f"v_lshrrev_b32 v{g}, 4, v{lane}")
    e(f"v_readfirstlane_b32 s40, v{t0}"); e(f"v_and_b32 v{i}, 15, v{lane}")
    e(f"s_and_b32 s41, s{sId}, 7"); e("s_lshl_b32 s41, s41, 2"); e("s_add_u32 s41, s41, s40")
    e(f"s_lshr_b32 s42, s{sId}, 3"); e("s_lshl_b32 s42, s42, 8")
    e(f"v_lshlrev_b32 v{t0}, 5, v{lane}"); e("s_lshl_b32 s43, s41, 11")
    for rb in range(16):
        e(f"buffer_load_dwordx4 {vr(kvp[rb],4)}, v{t0}, {sr(SK,4)}, s43 offen")
        e(f"buffer_load_dwordx4 {vr(kvp[rb]+4,4)}, v{t0}, {sr(SK,4)}, s43 offen offset:16")
        if rb < 15: e("s_add_u32 s43, s43, 65536")
    e(f"v_lshlrev_b32 v{t1}, 12, v{i}"); e(f"v_lshl_add_u32 v{t1}, v{g}, 5, v{t1}")
    e("s_lshl_b32 s43, s41, 7"); e(f"s_add_u32 s43, s43, {WS_ZP-WS_KVP}")
    e(f"buffer_load_dwordx4 {vr(zp,4)}, v{t1}, {sr(SK,4)}, s43 offen")
    e(f"buffer_load_dwordx4 {vr(zp+4,4)}, v{t1}, {sr(SK,4)}, s43 offen offset:16")
    e(f"v_add_u32 v{t2}, s42, v{i}")
    e(f"v_lshlrev_b32 v{t1}, 11, v{t2}"); e(f"v_lshl_add_u32 v{t1}, v{g}, 4, v{t1}")
    e("s_lshl_b32 s43, s41, 6")
    for m in range(16):
        e(f"buffer_load_dwordx4 {vr(ph[m],4)}, v{t1}, {sr(SQ,4)}, s43 offen")
        if m < 15: e("s_add_u32 s43, s43, 32768")
    e(f"s_mov_b32 s43, {LDA4}"); e(f"v_lshlrev_b32 v{t1}, 3, v{g}")
    e(f"v_mad_u32_u24 v{t2}, v{t2}, s43, v{t1}")
    e("s_waitcnt vmcnt(16)")
    for st in (8, 4, 2, 1):
        for rb in range(st):
            for r in range(8): e(f"v_add_f32 v{kvp[rb]+r}, v{kvp[rb]+r}, v{kvp[rb+st]+r}")
    for st in (8, 4, 2, 1):
        for r in range(8): e(f"v_add_f32_dpp v{zp+r}, v{zp+r}, v{zp+r} row_ror:{st} row_mask:0xf bank_mask:0xf")
    for r in range(4):
        e(f"v_cvt_pk_bf16_f32 v{akv+r}, v{kvp[0]+2*r}, v{kvp[0]+2*r+1}")
        e(f"v_cvt_pk_bf16_f32 v{az+r}, v{zp+2*r}, v{zp+2*r+1}")
    e("s_lshl_b32 s43, s41, 5")
    for m in range(16):
        e(f"s_waitcnt vmcnt({15-m})" if m else "s_waitcnt vmcnt(15)")
        n = kvp[m]
        e(f"v_mfma_f32_16x16x32_bf16 {vr(n,4)}, {vr(akv,4)}, {vr(ph[m],4)}, 0")
        e(f"v_mfma_f32_16x16x32_bf16 {vr(n+4,4)}, {vr(az,4)}, {vr(ph[m],4)}, 0")
    e("s_nop 7")
    for m in range(16):
        n = kvp[m]
        e(f"v_add_f32 v{n+4}, {f32(1e-6)}, v{n+4}"); e(f"v_rcp_f32 v{n+4}, v{n+4}"); e("s_nop 0")
        for r in range(4): e(f"v_mul_f32 v{n+r}, v{n+4}, v{n+r}")
        e(f"v_cvt_pk_bf16_f32 v{n}, v{n}, v{n+1}"); e(f"v_cvt_pk_bf16_f32 v{n+1}, v{n+2}, v{n+3}")
        e(f"buffer_store_dwordx2 {vr(n,2)}, v{t2}, {sr(SA,4)}, s43 offen")
        if m < 15: e(f"s_add_u32 s43, s43, {16*LDA4}")
    e("s_endpgm")
    return va.n

def k2():
    lab("k2_kernel")
    e("s_cmp_ge_u32 s2, 192"); e("s_cbranch_scc1 L_k2_end")
    e("s_load_dwordx2 s[12:13], s[0:1], 88")
    e("s_cmp_ge_u32 s2, 64"); e("s_cbranch_scc1 L_k2_ln")
    e("s_waitcnt lgkmcnt(0)")
    n1 = ojob(2, "k2")
    lab("L_k2_ln")
    va = Alloc(1)
    tl, fr, t0, t1 = [va() for _ in range(4)]
    stt = [va(16, 4) for _ in range(4)]
    d = [va(4, 4) for _ in range(6)]
    ad = [va() for _ in range(6)]
    u = [va() for _ in range(8)]
    SS, SI, SO = 16, 20, 24
    e("s_sub_u32 s40, s2, 64"); e("s_and_b32 s41, s40, 7"); e("s_lshr_b32 s42, s40, 3")
    e(f"v_and_b32 v{tl}, 31, v0"); e(f"v_lshrrev_b32 v{fr}, 5, v0")
    e("s_waitcnt lgkmcnt(0)")
    srd(SS, 12, 65536, WS_STATS); srd(SI, 12, 688*4096, WS_Z2T); srd(SO, 12, 688*4096, WS_Z2NT)
    e(f"v_lshlrev_b32 v{t0}, 6, v{tl}"); e("s_lshl_b32 s43, s41, 11")
    for z in range(4):
        for q in range(4): e(f"buffer_load_dwordx4 {vr(stt[z]+4*q,4)}, v{t0}, {sr(SS,4)}, s43 offen offset:{16*q}")
        e("s_add_u32 s43, s43, 16384")
    e("s_mul_i32 s42, s42, 43"); e(f"v_add_u32 v{t0}, s42, v{fr}"); e(f"v_lshlrev_b32 v{t0}, 12, v{t0}")
    e(f"v_lshl_add_u32 v{t0}, v{tl}, 4, v{t0}"); e("s_lshl_b32 s43, s41, 9")
    for it in range(6): e(f"v_add_u32 v{ad[it]}, {8*4096*it}, v{t0}")
    e(f"v_cmp_gt_u32 vcc, 3, v{fr}"); e(f"v_mov_b32 v{t1}, 0x7f000000"); e("s_nop 0")
    e(f"v_cndmask_b32 v{ad[5]}, v{t1}, v{ad[5]}, vcc")
    for it in range(6): e(f"buffer_load_dwordx4 {vr(d[it],4)}, v{ad[it]}, {sr(SI,4)}, s43 offen")
    e("s_waitcnt vmcnt(6)")
    e(f"s_mov_b32 s44, {f32(1/688)}")
    for r in range(16):
        e(f"v_add_f32 v{stt[0]+r}, v{stt[0]+r}, v{stt[1]+r}"); e(f"v_add_f32 v{stt[2]+r}, v{stt[2]+r}, v{stt[3]+r}")
        e(f"v_add_f32 v{stt[0]+r}, v{stt[0]+r}, v{stt[2]+r}"); e(f"v_mul_f32 v{stt[0]+r}, s44, v{stt[0]+r}")
    for k in range(8):
        a = stt[0] + 2*k
        e(f"v_fma_f32 v{a+1}, -v{a}, v{a}, v{a+1}"); e(f"v_max_f32 v{a+1}, 0, v{a+1}")
        e(f"v_add_f32 v{a+1}, {f32(1e-5)}, v{a+1}"); e(f"v_rsq_f32 v{a+1}, v{a+1}"); e("s_nop 0")
        e(f"v_mul_f32 v{a}, v{a}, v{a+1}")
    for it in range(6):
        e(f"s_waitcnt vmcnt({5})")
        for q in range(4):
            e(f"v_lshlrev_b32 v{u[2*q]}, 16, v{d[it]+q}"); e(f"v_and_b32 v{u[2*q+1]}, 0xffff0000, v{d[it]+q}")
        for k in range(8): e(f"v_fma_f32 v{u[k]}, v{u[k]}, v{stt[0]+2*k+1}, -v{stt[0]+2*k}")
        for q in range(4): e(f"v_cvt_pk_bf16_f32 v{d[it]+q}, v{u[2*q]}, v{u[2*q+1]}")
        e(f"buffer_store_dwordx4 {vr(d[it],4)}, v{ad[it]}, {sr(SO,4)}, s43 offen")
    lab("L_k2_end")
    e("s_endpgm")
    return max(n1, va.n), 0

def tilemap(sRow, sCT):
    e("s_and_b32 s3, s2, 7"); e("s_lshl_b32 s3, s3, 2"); e(f"s_lshr_b32 s{sRow}, s2, 6"); e(f"s_add_u32 s{sRow}, s{sRow}, s3")
    e(f"s_lshl_b32 s{sRow}, s{sRow}, 6"); e(f"s_bfe_u32 s{sCT}, s2, 0x30003")

def k3(S=6):
    va, sa = Alloc(1), Alloc(40)
    G = Gemm("k3", va, sa, 64, 'dir', 96, S, 32, 2, 3)
    z1 = [[va(2, 2) for _ in range(3)] for _ in range(2)]
    bs = [va() for _ in range(2)]; ua = [va() for _ in range(2)]
    G.alloc_tail(va)
    sRow, sCT, sCol, sM, sN = [sa() for _ in range(5)]
    SA, SB, SZ, SBS, SO = 16, 20, 24, 28, 32
    lab("k3_kernel")
    e("s_cmp_ge_u32 s2, 256"); e("s_cbranch_scc1 L_k3_end")
    e("s_load_dwordx2 s[4:5], s[0:1], 48"); e("s_load_dwordx2 s[6:7], s[0:1], 56"); e("s_load_dwordx2 s[12:13], s[0:1], 88")
    core.stamp_reset(); core.stamp()
    G.setup_lane()
    tilemap(sRow, sCT)
    e(f"s_mul_i32 s{sCol}, s{sCT}, 96"); e(f"s_mul_i32 s3, s{sCT}, 80"); e("s_add_u32 s3, s3, 64")
    e(f"s_min_u32 s{sCol}, s{sCol}, s3")
    e(f"s_and_b32 s{sM}, s{G.sW}, 1"); e(f"s_lshl_b32 s{sM}, s{sM}, 5")
    e(f"s_lshr_b32 s{sN}, s{G.sW}, 1"); e(f"s_mul_i32 s{sN}, s{sN}, 48")
    e("s_waitcnt lgkmcnt(0)")
    e(f"s_cmp_lt_u32 s{G.sW}, 4"); e("s_cbranch_scc1 L_k3_c")
    e(f"s_sub_u32 s{G.sW}, s{G.sW}, 4")
    srd(SA, 4, 2048*4096); srd(SB, 12, 688*4096, WS_Z2NT)
    G.setup_dir_dma(G.vA, 4096, sRow)
    G.setup_dir_dma(G.vB, 4096, sCol)
    e(f"s_mov_b32 s{G.sKa}, 0")
    G.sKb = G.sKa
    G.loader(SA, SB, lambda: e(f"s_add_u32 s{G.sKa}, s{G.sKa}, 128"))
    lab("L_k3_c")
    srd(SZ, 12, 2048*LDZ1, WS_Z1); srd(SBS, 6, 4096); srd(SO, 12, 2048*LDA4, WS_A4)
    e(f"s_add_u32 s3, s{sRow}, s{sM}"); e(f"v_add_u32 v{G.t0}, s3, v{G.i}")
    e(f"v_lshlrev_b32 v{G.t1}, 1, v{G.t0}")
    e(f"buffer_load_ushort v{bs[0]}, v{G.t1}, {sr(SBS,4)}, 0 offen"); e(f"buffer_load_ushort v{bs[1]}, v{G.t1}, {sr(SBS,4)}, 0 offen offset:32")
    e(f"s_add_u32 s3, s{sCol}, s{sN}"); e("s_lshl_b32 s3, s3, 1")
    e(f"v_lshlrev_b32 v{G.t1}, 3, v{G.g}"); e(f"v_add_u32 v{G.t1}, s3, v{G.t1}")
    e(f"s_mov_b32 s3, {LDZ1}"); e(f"v_mad_u32_u24 v{G.t2}, v{G.t0}, s3, v{G.t1}")
    e(f"s_mov_b32 s3, {LDA4}"); e(f"v_mad_u32_u24 v{ua[0]}, v{G.t0}, s3, v{G.t1}"); e(f"v_add_u32 v{ua[1]}, {16*LDA4}, v{ua[0]}")
    e(f"s_mov_b32 s3, {16*LDZ1}")
    for t in range(3):
        e(f"buffer_load_dwordx2 {vr(z1[0][t],2)}, v{G.t2}, {sr(SZ,4)}, 0 offen offset:{32*t}")
        e(f"buffer_load_dwordx2 {vr(z1[1][t],2)}, v{G.t2}, {sr(SZ,4)}, s3 offen offset:{32*t}")
    G.setup_reads([sM], sN, 0)
    G.run()
    e("s_waitcnt vmcnt(0)")
    e(f"s_add_u32 s3, s{sCol}, s{sN}"); e("s_cmp_eq_u32 s3, 672"); e("s_cbranch_scc0 L_k3_np")
    for m in range(2): e(f"v_mov_b32 v{z1[m][1]}, 0"); e(f"v_mov_b32 v{z1[m][1]+1}, 0")
    lab("L_k3_np")
    for m in range(2): e(f"v_lshlrev_b32 v{bs[m]}, 16, v{bs[m]}")
    T = [G.t0, G.t1, G.t2, G.t3]
    for t in range(3):
        if t == 2:
            e(f"s_lshr_b32 s3, s{sCT}, 2"); e(f"s_lshr_b32 s{G.sT}, s{G.sW}, 1"); e(f"s_and_b32 s3, s3, s{G.sT}")
            e("s_cbranch_scc1 L_k3_end")
        for m in range(2):
            a = G.acc[m][t]; z = z1[m][t]
            e(f"v_lshlrev_b32 v{T[0]}, 16, v{z}"); e(f"v_and_b32 v{T[1]}, 0xffff0000, v{z}")
            e(f"v_lshlrev_b32 v{T[2]}, 16, v{z+1}"); e(f"v_and_b32 v{T[3]}, 0xffff0000, v{z+1}")
            for r in range(4): e(f"v_add_f32 v{a+r}, v{bs[m]}, v{a+r}")
            for r in range(4): e(f"v_mul_f32 v{a+r}, v{T[r]}, v{a+r}")
            e(f"v_cvt_pk_bf16_f32 v{a}, v{a}, v{a+1}"); e(f"v_cvt_pk_bf16_f32 v{a+1}, v{a+2}, v{a+3}")
            e(f"buffer_store_dwordx2 {vr(a,2)}, v{ua[m]}, {sr(SO,4)}, 0 offen offset:{1024+32*t}")
    core.stamp_flush(0, 0)
    lab("L_k3_end")
    e("s_endpgm")
    return va.n, G.stage * G.S

def k4(S=6):
    va, sa = Alloc(1), Alloc(40)
    G = Gemm("k4", va, sa, 64, 'tr', 128, S, 19, 2, 2)
    xr = [[va(2, 2) for _ in range(2)] for _ in range(2)]
    oa = va()
    G.alloc_tail(va)
    sRow, sCT, sM, sQ, sLd, sSeg, sColB = [sa() for _ in range(7)]
    SA, SB, SX, SO = 16, 20, 24, 28
    lab("k4_kernel")
    e("s_cmp_ge_u32 s2, 256"); e("s_cbranch_scc1 L_k4_end")
    e("s_load_dwordx2 s[4:5], s[0:1], 0"); e("s_load_dwordx2 s[6:7], s[0:1], 24"); e("s_load_dwordx2 s[8:9], s[0:1], 64")
    e("s_load_dwordx2 s[10:11], s[0:1], 72"); e("s_load_dwordx2 s[12:13], s[0:1], 88")
    core.stamp_reset(); core.stamp()
    G.setup_lane()
    tilemap(sRow, sCT)
    e(f"s_and_b32 s{sM}, s{G.sW}, 1"); e(f"s_lshl_b32 s{sM}, s{sM}, 5")
    e(f"s_and_b32 s{sQ}, s{G.sW}, 2")
    e(f"s_mov_b32 s{sLd}, 1024"); e(f"s_mov_b32 s{sSeg}, 0"); e(f"s_lshl_b32 s{sColB}, s{sCT}, 7")
    e("s_waitcnt lgkmcnt(0)")
    e(f"s_cmp_lt_u32 s{G.sW}, 4"); e("s_cbranch_scc1 L_k4_c")
    e(f"s_sub_u32 s{G.sW}, s{G.sW}, 4")
    srd(SA, 12, 2048*LDA4, WS_A4); srd(SB, 6, 512*1024)
    G.setup_dir_dma(G.vA, LDA4, sRow)
    G.setup_tr_dma(sLd, sSeg, sColB)
    e(f"s_mov_b32 s{G.sKa}, 0"); e(f"s_mov_b32 s{G.sKb}, 0")
    def advance():
        e(f"s_add_u32 s{G.sKa}, s{G.sKa}, 128"); e(f"s_add_u32 s{G.sKb}, s{G.sKb}, 65536")
        e(f"s_cmp_eq_u32 s{G.sCnt}, 8")
        e(f"s_cselect_b32 s{SB}, s8, s{SB}"); e(f"s_cselect_b32 s{SB+1}, s9, s{SB+1}")
        e(f"s_cselect_b32 s{SB+2}, {688*1024}, s{SB+2}"); e(f"s_cselect_b32 s{G.sKb}, 0, s{G.sKb}")
    G.loader(SA, SB, advance)
    lab("L_k4_c")
    srd(SX, 4, 2048*1024); srd(SO, 10, 2048*1024)
    e(f"s_add_u32 s3, s{sRow}, s{sM}"); e(f"v_add_u32 v{G.t0}, s3, v{G.i}"); e(f"v_lshlrev_b32 v{G.t0}, 10, v{G.t0}")
    e(f"s_lshl_b32 s3, s{sQ}, 5"); e(f"s_add_u32 s3, s3, s{sColB}")
    e(f"v_lshl_add_u32 v{G.t0}, v{G.g}, 3, v{G.t0}"); e(f"v_add_u32 v{oa}, s3, v{G.t0}")
    e("s_mov_b32 s3, 16384")
    for t in range(2):
        e(f"buffer_load_dwordx2 {vr(xr[0][t],2)}, v{oa}, {sr(SX,4)}, 0 offen offset:{32*t}")
        e(f"buffer_load_dwordx2 {vr(xr[1][t],2)}, v{oa}, {sr(SX,4)}, s3 offen offset:{32*t}")
    G.setup_reads([sM], sQ, 1)
    G.run()
    e("s_waitcnt vmcnt(0)")
    T = [G.t0, G.t1, G.t2, G.t3]
    for t in range(2):
        for m in range(2):
            a = G.acc[m][t]; z = xr[m][t]
            e(f"v_lshlrev_b32 v{T[0]}, 16, v{z}"); e(f"v_and_b32 v{T[1]}, 0xffff0000, v{z}")
            e(f"v_lshlrev_b32 v{T[2]}, 16, v{z+1}"); e(f"v_and_b32 v{T[3]}, 0xffff0000, v{z+1}")
            for r in range(4): e(f"v_add_f32 v{a+r}, v{T[r]}, v{a+r}")
            e(f"v_cvt_pk_bf16_f32 v{a}, v{a}, v{a+1}"); e(f"v_cvt_pk_bf16_f32 v{a+1}, v{a+2}, v{a+3}")
            e(f"buffer_store_dwordx2 {vr(a,2)}, v{oa}, {sr(SO,4)}, {'s3' if m else '0'} offen offset:{32*t}")
    core.stamp_flush(0, 0)
    lab("L_k4_end")
    e("s_endpgm")
    return va.n, G.stage * G.S
```

```python
import sys, os
sys.path.insert(0, os.path.dirname(__file__))
import core
from core import out
import k1, k234
NAME = "parallel_sum__linear_kernel_hedgehog__mixer_gmlp__prompt"
def build(path, kernels):
    del out[:]
    info = []
    for nm, fn, grid, blk in kernels:
        out.append(f".globl {nm}_kernel\n.p2align 8\n.type {nm}_kernel,@function")
        nv, lds = fn()
        info.append((nm, nv, lds, (grid, blk)))
    hdr = open(f"cdna_kernels/{NAME}.s.ref").read().split("; Override")[0]
    s = hdr
    for nm, nv, lds, grid in info:
        s += f"; @launch kernel={nm}_kernel grid=({grid[0]},1,1) block=({grid[1]},1,1) lds={lds}\n"
    s += '.amdgcn_target "amdgcn-amd-amdhsa--gfx950"\n.text\n' + "\n".join(out) + '\nL_text_end:\n.section .rodata,"a"\n'
    for nm, nv, lds, grid in info:
        nv4 = (nv + 7) // 8 * 8
        assert nv4 <= 256, (nm, nv)
        s += f""".p2align 6
.amdhsa_kernel {nm}_kernel
  .amdhsa_next_free_vgpr {nv4}
  .amdhsa_next_free_sgpr 102
  .amdhsa_accum_offset {nv4}
  .amdhsa_group_segment_fixed_size 0
  .amdhsa_kernarg_size 96
  .amdhsa_user_sgpr_count 2
  .amdhsa_user_sgpr_kernarg_segment_ptr 1
  .amdhsa_system_sgpr_workgroup_id_x 1
.end_amdhsa_kernel
"""
    open(path, "w").write(s)
    print(info)
if __name__ == "__main__":
    core.STAMP = len(sys.argv) > 1
    build(f"cdna_kernels/{NAME}.s", [("k1", k1.k1, 256, 768), ("k2", k234.k2, 384, 256), ("k3", k234.k3, 256, 512), ("k4", k234.k4, 256, 512)])
```

```python
out = []
def e(s): out.append("    " + s)
def lab(s): out.append(s + ":")
def vr(b, n=1): return f"v{b}" if n == 1 else f"v[{b}:{b+n-1}]"
def sr(b, n=1): return f"s{b}" if n == 1 else f"s[{b}:{b+n-1}]"

class Alloc:
    def __init__(self, start): self.n = start
    def __call__(self, cnt=1, al=1):
        self.n = (self.n + al - 1) // al * al
        b = self.n; self.n += cnt
        return b

MB = 1 << 20
WS_PHIQ, WS_Z1, WS_Z2T, WS_Z2NT, WS_STATS, WS_KVP, WS_ZP, WS_A4 = 0, 4*MB, 8*MB, 12*MB, 16*MB, 17*MB, 18*MB, 20*MB
LDZ1 = 1408
LDA4 = 2432

def srd(d, ptr, nbytes, off=0):
    if off:
        e(f"s_add_u32 s{d}, s{ptr}, {off}")
        e(f"s_addc_u32 s{d+1}, s{ptr+1}, 0")
    else:
        e(f"s_mov_b32 s{d}, s{ptr}")
        e(f"s_mov_b32 s{d+1}, s{ptr+1}")
    e(f"s_mov_b32 s{d+2}, {nbytes}")
    e(f"s_mov_b32 s{d+3}, 0x00020000")

def xreduce(ops, regs, tmps):
    for sw in ("v_permlane32_swap_b32", "v_permlane16_swap_b32"):
        for r, t in zip(regs, tmps): e(f"v_mov_b32 v{t}, v{r}")
        if len(regs) < 3: e("s_nop 1")
        for r, t in zip(regs, tmps): e(f"{sw} v{r}, v{t}")
        e("s_nop 0")
        for o, r, t in zip(ops, regs, tmps): e(f"{o} v{r}, v{r}, v{t}")

def reduce4(op, A, B, C, D):
    e("s_nop 1")
    e(f"v_permlane32_swap_b32 v{A}, v{B}"); e(f"v_permlane32_swap_b32 v{C}, v{D}"); e("s_nop 0")
    e(f"{op} v{A}, v{A}, v{B}"); e(f"{op} v{C}, v{C}, v{D}"); e("s_nop 1")
    e(f"v_permlane16_swap_b32 v{A}, v{C}"); e("s_nop 0")
    e(f"{op} v{A}, v{A}, v{C}")
def bcast4(A, B, C, D):
    e(f"v_mov_b32 v{C}, v{A}"); e("s_nop 1")
    e(f"v_permlane16_swap_b32 v{A}, v{C}"); e("s_nop 0")
    e(f"v_mov_b32 v{B}, v{A}"); e(f"v_mov_b32 v{D}, v{C}"); e("s_nop 1")
    e(f"v_permlane32_swap_b32 v{A}, v{B}"); e(f"v_permlane32_swap_b32 v{C}, v{D}"); e("s_nop 0")

def pairstore(items):
    for a, b, ad in items:
        e(f"v_cvt_pk_bf16_f32 v{a}, v{a}, v{a+1}"); e(f"v_cvt_pk_bf16_f32 v{a+1}, v{a+2}, v{a+3}")
        e(f"v_cvt_pk_bf16_f32 v{a+2}, v{b}, v{b+1}"); e(f"v_cvt_pk_bf16_f32 v{a+3}, v{b+2}, v{b+3}")
    e("s_nop 1")
    for a, b, ad in items:
        e(f"v_permlane16_swap_b32 v{a}, v{a+2}"); e(f"v_permlane16_swap_b32 v{a+1}, v{a+3}")
    e("s_nop 0")
    for a, b, ad in items: e(f"buffer_store_dwordx4 {vr(a,4)}, {ad}")

class Gemm:
    def __init__(s, name, va, sa, MT, bmode, NB, S, nst, nmt, nnt, NC=4, rot=False):
        s.name, s.MT, s.bmode, s.NB, s.S, s.nst, s.nmt, s.nnt, s.rot, s.NC = name, MT, bmode, NB, S, nst, nmt, nnt, rot, NC
        s.abytes = MT * 128
        s.bbytes = NB * 128 if bmode == 'dir' else 64 * NB
        s.stage = s.abytes + s.bbytes
        s.nA, s.nB = s.abytes // 4096, s.bbytes // 4096
        s.nD = s.nA + s.nB
        s.lane, s.g, s.i = va(), va(), va()
        s.t0, s.t1, s.t2, s.t3 = va(), va(), va(), va()
        s.acc = [[va(4, 4) for _ in range(nnt)] for _ in range(nmt)]
        s.vA = [s.acc[0][0] + k for k in range(s.nA)]
        s.vB = [s.acc[0][0] + s.nA + k for k in range(s.nB)]
        s.sW, s.sSlot, s.sSlotW, s.sKa, s.sKb, s.sCnt, s.sT = sa(), sa(), sa(), sa(), sa(), sa(), sa()
    def alloc_tail(s, va):
        s.npA = 4 if s.rot else 1
        s.fr0 = va(0, 4)
        s.fa = [[va(4, 4) for _ in range(s.nmt)] for _ in range(2)]
        s.fb = [[va(4, 4) for _ in range(s.nnt)] for _ in range(2)]
        s.aab = [[va() for _ in range(s.npA)] for _ in range(2)]
        s.aac = [[va() for _ in range(s.npA)] for _ in range(2)]
        nb = s.nnt if s.bmode == 'tr' else 2
        s.bab = [va() for _ in range(nb)]
        s.bac = [va() for _ in range(nb)]
        s.frn = va.n - s.fr0

    def setup_lane(s):
        e(f"v_and_b32 v{s.lane}, 63, v0")
        e(f"v_lshrrev_b32 v{s.t0}, 6, v0")
        e(f"v_lshrrev_b32 v{s.g}, 4, v{s.lane}")
        e(f"v_readfirstlane_b32 s{s.sW}, v{s.t0}")
        e(f"v_and_b32 v{s.i}, 15, v{s.lane}")

    def setup_dir_dma(s, regs, ld, sRowBase):
        t0, t1, t2 = s.t0, s.t1, s.t2
        e(f"s_and_b32 s{s.sT}, s{s.sW}, 1")
        e(f"s_lshl_b32 s{s.sT}, s{s.sT}, 2")
        e(f"v_add_u32 v{t0}, s{s.sT}, v{s.g}")
        e(f"v_and_b32 v{t1}, 7, v{s.lane}")
        e(f"v_xor_b32 v{t0}, v{t0}, v{t1}")
        e(f"v_lshlrev_b32 v{t0}, 4, v{t0}")
        e(f"s_lshl_b32 s{s.sT}, s{s.sW}, 3")
        e(f"s_add_u32 s{s.sT}, s{s.sT}, s{sRowBase}")
        e(f"v_lshrrev_b32 v{t1}, 3, v{s.lane}")
        e(f"v_add_u32 v{t1}, s{s.sT}, v{t1}")
        e(f"s_mov_b32 s{s.sT}, {ld}")
        e(f"v_mad_u32_u24 v{regs[0]}, v{t1}, s{s.sT}, v{t0}")
        for k in range(1, len(regs)):
            e(f"v_add_u32 v{regs[k]}, {32*ld*k}, v{regs[0]}")

    def setup_tr_dma(s, sLd, sSeg, sColB):
        cpr = s.NB // 16
        t0, t1, t2, t3 = s.t0, s.t1, s.t2, s.t3
        for k in range(s.nB):
            e(f"s_lshl_b32 s{s.sT}, s{s.sW}, 6")
            e(f"s_add_u32 s{s.sT}, s{s.sT}, {256*k}")
            e(f"v_add_u32 v{t0}, s{s.sT}, v{s.lane}")
            if cpr == 24:
                e(f"v_mul_u32_u24 v{t1}, 2731, v{t0}")
                e(f"v_lshrrev_b32 v{t1}, 16, v{t1}")
                e(f"v_mul_u32_u24 v{t2}, 24, v{t1}")
                e(f"v_sub_u32 v{t0}, v{t0}, v{t2}")
            else:
                e(f"v_lshrrev_b32 v{t1}, 3, v{t0}")
                e(f"v_and_b32 v{t0}, 7, v{t0}")
            e(f"v_and_b32 v{t2}, 2, v{t1}")
            e(f"v_lshrrev_b32 v{t3}, 1, v{t1}")
            e(f"v_and_b32 v{t3}, 4, v{t3}")
            e(f"v_or_b32 v{t2}, v{t2}, v{t3}")
            e(f"v_xor_b32 v{t0}, v{t0}, v{t2}")
            e(f"v_lshrrev_b32 v{t2}, 3, v{t0}")
            e(f"v_mul_lo_u32 v{t2}, v{t2}, s{sSeg}")
            e(f"v_lshl_add_u32 v{t0}, v{t0}, 4, v{t2}")
            e(f"v_mul_lo_u32 v{t1}, v{t1}, s{sLd}")
            e(f"v_add3_u32 v{s.vB[k]}, v{t0}, v{t1}, s{sColB}")

    def setup_reads(s, sMrow, sNq, qstep):
        t0, t1, t2 = s.t0, s.t1, s.t2
        e(f"v_lshrrev_b32 v{t0}, 1, v{s.i}")
        e(f"v_xor_b32 v{t0}, v{t0}, v{s.g}")
        e(f"v_lshlrev_b32 v{t0}, 4, v{t0}")
        e(f"v_lshl_add_u32 v{t0}, v{s.i}, 7, v{t0}")
        e(f"v_xor_b32 v{t1}, 64, v{t0}")
        for p in range(s.npA):
            e(f"s_lshl_b32 s{s.sT}, s{sMrow[p]}, 7")
            e(f"v_add_u32 v{s.aab[0][p]}, s{s.sT}, v{t0}")
            e(f"v_add_u32 v{s.aab[1][p]}, s{s.sT}, v{t1}")
        if s.bmode == 'dir':
            e(f"s_lshl_b32 s{s.sT}, s{sNq}, 7")
            e(f"s_add_u32 s{s.sT}, s{s.sT}, {s.abytes}")
            e(f"v_add_u32 v{s.bab[0]}, s{s.sT}, v{t0}")
            e(f"v_add_u32 v{s.bab[1]}, s{s.sT}, v{t1}")
        else:
            e(f"v_lshrrev_b32 v{t0}, 2, v{s.i}")
            e(f"v_lshl_add_u32 v{t0}, v{s.g}, 3, v{t0}")
            e(f"v_mul_u32_u24 v{t0}, {s.NB}, v{t0}")
            e(f"v_and_b32 v{t1}, 3, v{s.i}")
            e(f"v_lshl_add_u32 v{t0}, v{t1}, 3, v{t0}")
            e(f"v_add_u32 v{t0}, {s.abytes}, v{t0}")
            e(f"v_lshrrev_b32 v{t1}, 3, v{s.i}")
            e(f"v_and_b32 v{t2}, 1, v{s.g}")
            e(f"v_lshl_or_b32 v{t1}, v{t2}, 1, v{t1}")
            for t in range(s.nnt):
                e(f"s_add_u32 s{s.sT}, s{sNq}, {qstep*t}")
                e(f"v_xor_b32 v{t2}, s{s.sT}, v{t1}")
                e(f"v_lshl_add_u32 v{s.bab[t]}, v{t2}, 5, v{t0}")

    def dma(s, srdA, srdB):
        for k in range(s.nA):
            e(f"s_add_u32 m0, s{s.sSlotW}, {4096*k}")
            e("s_nop 0")
            e(f"buffer_load_dwordx4 v{s.vA[k]}, {sr(srdA,4)}, s{s.sKa} offen lds")
        for k in range(s.nB):
            e(f"s_add_u32 m0, s{s.sSlotW}, {s.abytes + 4096*k}")
            e("s_nop 0")
            e(f"buffer_load_dwordx4 v{s.vB[k]}, {sr(srdB,4)}, s{s.sKb} offen lds")

    def cur_addrs(s):
        for hh in range(2):
            for p in range(s.npA): e(f"v_add_u32 v{s.aac[hh][p]}, s{s.sSlot}, v{s.aab[hh][p]}")
        for a, b in zip(s.bac, s.bab): e(f"v_add_u32 v{a}, s{s.sSlot}, v{b}")

    def reads(s, hh):
        for t in range(s.nnt):
            if s.bmode == 'dir':
                e(f"ds_read_b128 {vr(s.fb[hh][t],4)}, v{s.bac[hh]} offset:{2048*t}")
            else:
                e(f"ds_read_b64_tr_b16 {vr(s.fb[hh][t],2)}, v{s.bac[t]} offset:{32*hh*s.NB}")
                e(f"ds_read_b64_tr_b16 {vr(s.fb[hh][t]+2,2)}, v{s.bac[t]} offset:{(32*hh+4)*s.NB}")
        for m in range(s.nmt):
            if s.rot: e(f"ds_read_b128 {vr(s.fa[hh][m],4)}, v{s.aac[hh][m]}")
            else: e(f"ds_read_b128 {vr(s.fa[hh][m],4)}, v{s.aac[hh][0]} offset:{2048*m}")

    def capture(s, fn):
        n = len(out); fn(); x = out[n:]; del out[n:]
        return x

    def mfmas(s, hh, extra=None, fill=()):
        ex = list(extra(hh)) if extra else []
        fill = list(fill)
        nm = s.nmt * s.nnt
        per = (len(fill) + nm - 1) // nm
        for m in range(s.nmt):
            for t in range(s.nnt):
                e(f"v_mfma_f32_16x16x32_bf16 {vr(s.acc[m][t],4)}, {vr(s.fb[hh][t],4)}, {vr(s.fa[hh][m],4)}, {vr(s.acc[m][t],4)}")
                for _ in range(per):
                    if fill: out.append(fill.pop(0))
        for x in ex: e(x)

    def loader(s, srdA, srdB, advance, mid=None, pre=None, post=None, nx=0):
        e(f"s_lshl_b32 s{s.sSlotW}, s{s.sW}, 10")
        e(f"s_add_u32 s{s.sSlot}, s{s.sSlotW}, {s.stage*s.S}")
        e(f"s_mov_b32 s{s.sCnt}, 0")
        def step():
            s.dma(srdA, srdB)
            e(f"s_add_u32 s{s.sCnt}, s{s.sCnt}, 1")
            advance()
            e(f"s_add_u32 s{s.sSlotW}, s{s.sSlotW}, {s.stage}")
            e(f"s_cmp_eq_u32 s{s.sSlotW}, s{s.sSlot}")
            e(f"s_cselect_b32 s{s.sT}, {s.stage*s.S}, 0")
            e(f"s_sub_u32 s{s.sSlotW}, s{s.sSlotW}, s{s.sT}")
        P = 2
        lab(f"L_{s.name}_lpro")
        step()
        e(f"s_cmp_lg_u32 s{s.sCnt}, {P}"); e(f"s_cbranch_scc1 L_{s.name}_lpr2")
        e(f"s_waitcnt vmcnt({(P-1)*s.nD})"); e("s_barrier")
        lab(f"L_{s.name}_lpr2")
        e(f"s_cmp_lt_u32 s{s.sCnt}, {s.S}"); e(f"s_cbranch_scc1 L_{s.name}_lpro")
        lab(f"L_{s.name}_lloop")
        e(f"s_waitcnt vmcnt({(s.S-2)*s.nD})"); e("s_barrier")
        step()
        e(f"s_cmp_lt_u32 s{s.sCnt}, {s.nst}"); e(f"s_cbranch_scc1 L_{s.name}_lloop")
        if mid: mid()
        for i in range(s.nst - s.S, s.nst):
            if i == s.nst - 1:
                if pre: pre()
            else: e(f"s_waitcnt vmcnt({(s.nst-1-(i+1))*s.nD + nx})")
            e("s_barrier")
        if post: post()
        e("s_endpgm")

    def run(s, extra=None, hooks={}):
        stamp()
        if hooks:
            e(f"s_branch L_{s.name}_hskip")
            for c, fn in hooks.items():
                lab(f"L_{s.name}_h{c}"); fn(); e(f"s_branch L_{s.name}_hback")
            lab(f"L_{s.name}_hskip")
        for m in range(s.nmt):
            for t in range(s.nnt):
                for r in range(4): e(f"v_mov_b32 v{s.acc[m][t]+r}, 0")
        e(f"s_mov_b32 s{s.sCnt}, 0")
        e(f"s_mov_b32 s{s.sSlot}, 0")
        s.cur_addrs()
        e("s_barrier")
        stamp()
        s.reads(0)
        lab(f"L_{s.name}_loop")
        e("s_waitcnt lgkmcnt(0)")
        def upd():
            s.reads(1)
            e(f"s_add_u32 s{s.sSlot}, s{s.sSlot}, {s.stage}")
            e(f"s_cmp_eq_u32 s{s.sSlot}, {s.stage*s.S}")
            e(f"s_cselect_b32 s{s.sSlot}, 0, s{s.sSlot}")
            e(f"s_add_u32 s{s.sCnt}, s{s.sCnt}, 1")
            s.cur_addrs()
        s.mfmas(0, extra, s.capture(upd))
        e("s_waitcnt lgkmcnt(0)")
        e("s_barrier")
        s.mfmas(1, extra, s.capture(lambda: s.reads(0)))
        for c in hooks: e(f"s_cmp_eq_u32 s{s.sCnt}, {c}"); e(f"s_cbranch_scc1 L_{s.name}_h{c}")
        lab(f"L_{s.name}_hback")
        e(f"s_cmp_lt_u32 s{s.sCnt}, {s.nst}")
        e(f"s_cbranch_scc1 L_{s.name}_loop")
        e("s_waitcnt lgkmcnt(0)")
        e("s_nop 7")
        stamp()

STAMP = False
_nst = [0]
def stamp_reset(): _nst[0] = 0
def stamp():
    if not STAMP: return
    e("s_memtime s[98:99]"); e("s_waitcnt lgkmcnt(0)"); e(f"s_mov_b32 s{80+_nst[0]}, s98"); _nst[0] += 1
def stamp_flush(wg, base, n=None):
    if not STAMP: return
    import random
    L = f"L_st{random.randrange(1<<30)}"
    stamp()
    e(f"s_cmp_lg_u32 s2, {wg}"); e(f"s_cbranch_scc1 {L}")
    e("s_load_dwordx2 s[96:97], s[0:1], 80"); e("s_waitcnt lgkmcnt(0)")
    e("s_mov_b32 s92, s96"); e("s_mov_b32 s93, s97"); e("s_mov_b32 s94, 256"); e("s_mov_b32 s95, 0x00020000")
    e("v_cmp_eq_u32 vcc, 0, v0"); e("s_and_saveexec_b64 s[96:97], vcc"); e("v_mov_b32 v1, 0")
    for k in range(_nst[0]):
        e(f"s_sub_u32 s98, s{80+k}, s80"); e("v_mov_b32 v2, s98")
        e(f"buffer_store_dword v2, v1, s[92:95], 0 offen offset:{4*(base+k)}")
    e("s_mov_b64 exec, s[96:97]")
    out.append(L + ":")
    _nst[0] -= 1
```

```python
from core import *
import core
L2E = 0x3fb8aa3b
import struct
def f32(x): return struct.unpack('<I', struct.pack('<f', x))[0]

def k1():
    va, sa = Alloc(1), Alloc(40)
    NM = 4
    G = Gemm("k1", va, sa, 128, 'tr', 384, 3, 8, NM, 3, NC=8, rot=True)
    LDSX = 32768
    LCS, LZS = LDSX + 1024, LDSX + 2560
    cs = [va(4, 4) for _ in range(3)]
    ones = va(4, 4)
    rs = va(4, 4); gr = va(4, 4)
    ss = [rs, gr]
    wph = va(4, 2); idm = va(2, 2)
    G.alloc_tail(va)
    sRB, sCT, sRow, sLd, sSeg, sColB, sL, sIsZ, sZi = [sa() for _ in range(9)]
    sTok = [sa() for _ in range(4)]
    sC0, sC1, sNv, sWn, sWm = sa(), sa(), sa(), sa(), sa()
    SX, SW, SP, SO, SO2 = 16, 20, 24, 28, 32
    lab("k1_kernel")
    e("s_cmp_ge_u32 s2, 256"); e("s_cbranch_scc1 L_k1_end")
    e("s_load_dwordx2 s[4:5], s[0:1], 0"); e("s_load_dwordx2 s[6:7], s[0:1], 8")
    e("s_load_dwordx2 s[8:9], s[0:1], 16"); e("s_load_dwordx2 s[10:11], s[0:1], 40")
    e("s_load_dwordx2 s[12:13], s[0:1], 88")
    core.stamp_reset(); core.stamp()
    G.setup_lane()
    e(f"s_lshr_b32 s{sRB}, s2, 4"); e(f"s_and_b32 s{sCT}, s2, 15")
    e(f"s_lshl_b32 s{sRow}, s{sRB}, 7")
    e(f"s_lshr_b32 s{sIsZ}, s{sCT}, 3")
    e(f"s_and_b32 s{sZi}, s{sCT}, 3")
    e(f"s_cmp_lt_u32 s{G.sW}, 8"); e("s_cbranch_scc1 L_k1_c")
    e(f"s_sub_u32 s{G.sW}, s{G.sW}, 8")
    e(f"s_mul_i32 s{sColB}, s{sZi}, 352")
    e(f"s_bfe_u32 s3, s{sCT}, 0x10002"); e("s_mul_i32 s3, s3, 1376")
    e(f"s_add_u32 s{sColB}, s{sColB}, s3")
    e(f"s_lshl_b32 s3, s{sCT}, 7")
    e(f"s_cmp_eq_u32 s{sIsZ}, 1")
    e(f"s_cselect_b32 s{sColB}, s{sColB}, s3")
    e(f"s_mov_b32 s{sLd}, 3072"); e(f"s_cselect_b32 s{sLd}, 2752, s{sLd}")
    e(f"s_cselect_b32 s{sSeg}, 0, 896")
    e(f"s_mov_b32 s{SW+2}, {512*3072}"); e(f"s_cselect_b32 s{SW+2}, {512*2752}, s{SW+2}"); e(f"s_mov_b32 s{SW+3}, 0x00020000")
    e("s_waitcnt lgkmcnt(0)")
    e(f"s_cselect_b32 s{SW}, s10, s6"); e(f"s_cselect_b32 s{SW+1}, s11, s7")
    srd(SX, 4, 2048*1024)
    G.setup_dir_dma(G.vA, 1024, sRow)
    G.setup_tr_dma(sLd, sSeg, sColB)
    e(f"s_mov_b32 s{G.sKa}, 0"); e(f"s_mov_b32 s{G.sKb}, 0")
    e(f"s_lshl_b32 s{sLd}, s{sLd}, 6")
    def advance():
        e(f"s_add_u32 s{G.sKa}, s{G.sKa}, 128"); e(f"s_add_u32 s{G.sKb}, s{G.sKb}, s{sLd}")
    G.loader(SX, SW, advance)
    lab("L_k1_c")
    e(f"s_and_b32 s{sWn}, s{G.sW}, 3"); e(f"s_lshr_b32 s{sWm}, s{G.sW}, 2")
    e(f"s_lshl_b32 s3, s{sWm}, 6")
    for p in range(4):
        e(f"s_add_u32 s{sTok[p]}, s{sWn}, {p}"); e(f"s_and_b32 s{sTok[p]}, s{sTok[p]}, 3")
        e(f"s_lshl_b32 s{sTok[p]}, s{sTok[p]}, 4"); e(f"s_add_u32 s{sTok[p]}, s{sTok[p]}, s3")
    G.setup_reads(sTok, sWn, 4)
    e("s_waitcnt lgkmcnt(0)")
    srd(SP, 8, 32*512)
    e(f"s_and_b32 s3, s{sCT}, 7"); e("s_lshl_b32 s3, s3, 2"); e(f"s_add_u32 s3, s3, s{sWn}"); e("s_lshl_b32 s3, s3, 9")
    e(f"v_lshlrev_b32 v{G.t0}, 7, v{G.g}"); e(f"v_lshl_add_u32 v{G.t0}, v{G.i}, 1, v{G.t0}")
    for r in range(4): e(f"buffer_load_ushort v{wph+r}, v{G.t0}, {sr(SP,4)}, s3 offen offset:{32*r}")
    for r in range(4): e(f"v_mov_b32 v{ones+r}, 0x3f803f80")
    for t in range(3):
        for r in range(4): e(f"v_mov_b32 v{cs[t]+r}, 0")
    for r in range(8): e(f"v_mov_b32 v{rs+r}, 0")
    e(f"v_lshlrev_b32 v{G.t0}, 2, v{G.g}"); e(f"v_sub_u32 v{G.t0}, v{G.i}, v{G.t0}")
    e(f"v_mov_b32 v{G.t1}, 0x3f80"); e(f"v_mov_b32 v{G.t2}, 0x3f800000")
    for q in range(2):
        e(f"v_cmp_eq_u32 vcc, {2*q}, v{G.t0}"); e("s_nop 1"); e(f"v_cndmask_b32 v{idm+q}, 0, v{G.t1}, vcc")
        e(f"v_cmp_eq_u32 vcc, {2*q+1}, v{G.t0}"); e("s_nop 1"); e(f"v_cndmask_b32 v{idm+q}, v{idm+q}, v{G.t2}, vcc")
    for r in range(4): e(f"v_cmp_eq_u32 s[{70+2*r}:{71+2*r}], {r}, v{G.t0}")
    def extra(hh):
        x = [f"v_mfma_f32_16x16x32_bf16 {vr(rs,4)}, {vr(ones,4)}, {vr(G.fa[hh][0],4)}, {vr(rs,4)}",
             f"v_mfma_f32_16x16x32_bf16 {vr(gr,4)}, {vr(G.fa[hh][0],4)}, {vr(G.fa[hh][0],4)}, {vr(gr,4)}"]
        x.append(f"s_cmp_eq_u32 s{sWm}, {hh}")
        x.append(f"s_cbranch_scc0 L_k1_cs{hh}")
        x += [f"v_mfma_f32_16x16x32_bf16 {vr(cs[t],4)}, {vr(G.fb[hh][t],4)}, {vr(ones,4)}, {vr(cs[t],4)}" for t in range(3)]
        x.append(f"L_k1_cs{hh}:")
        return x
    G.run(extra)
    ta = Alloc(G.fr0)
    tm = [ta() for _ in range(8)]
    mr = [ta(2, 2) for _ in range(NM)]
    tok = [ta() for _ in range(NM)]
    kv = [ta(4, 4) for _ in range(4)]
    e(f"s_mul_i32 s{G.sT}, s{G.sW}, 192"); e(f"s_add_u32 s{G.sT}, s{G.sT}, {LCS}")
    e(f"v_lshlrev_b32 v{tm[6]}, 4, v{G.g}"); e(f"v_add_u32 v{tm[6]}, s{G.sT}, v{tm[6]}")
    for t in range(3): e(f"ds_write_b128 v{tm[6]}, {vr(cs[t],4)} offset:{64*t}")
    e(f"v_cndmask_b32 v{gr}, 0, v{gr}, s[70:71]")
    for r in range(1, 4): e(f"v_cndmask_b32 v{gr}, v{gr}, v{gr+r}, s[{70+2*r}:{71+2*r}]")
    xreduce(["v_add_f32"], [gr], tm[:1])
    e(f"s_mov_b32 s3, {f32(1/512)}")
    e(f"v_lshlrev_b32 v{tm[4]}, 3, v{G.i}")
    e(f"s_lshl_b32 s{G.sT}, s{sTok[0]}, 3"); e(f"s_add_u32 s{G.sT}, s{G.sT}, {LDSX}")
    e(f"v_add_u32 v{tm[5]}, s{G.sT}, v{tm[4]}")
    a = mr[0]
    e(f"v_mul_f32 v{a}, s3, v{ss[0]}"); e(f"v_mul_f32 v{a+1}, s3, v{ss[1]}")
    e(f"v_fma_f32 v{a+1}, -v{a}, v{a}, v{a+1}"); e(f"v_max_f32 v{a+1}, 0, v{a+1}")
    e(f"v_add_f32 v{a+1}, {f32(1e-5)}, v{a+1}"); e(f"v_rsq_f32 v{a+1}, v{a+1}")
    e(f"s_xor_b32 s{G.sT}, s{G.sW}, 4"); e(f"s_mul_i32 s{G.sT}, s{G.sT}, 192"); e(f"s_add_u32 s{G.sT}, s{G.sT}, {LCS}")
    e(f"ds_write_b64 v{tm[5]}, {vr(a,2)}")
    e(f"v_lshlrev_b32 v{tm[6]}, 4, v{G.g}"); e(f"v_add_u32 v{tm[6]}, s{G.sT}, v{tm[6]}")
    for p in range(1, 4):
        e(f"s_lshl_b32 s{G.sT}, s{sTok[p]}, 3"); e(f"s_add_u32 s{G.sT}, s{G.sT}, {LDSX}")
        e(f"v_add_u32 v{tm[p]}, s{G.sT}, v{tm[4]}")
    e("s_waitcnt lgkmcnt(0)"); e("s_barrier")
    for t in range(3): e(f"ds_read_b128 {vr(kv[t],4)}, v{tm[6]} offset:{64*t}")
    for p in range(1, 4): e(f"ds_read_b64 {vr(mr[p],2)}, v{tm[p]}")
    for m in range(NM):
        e(f"s_add_u32 s{G.sT}, s{sTok[m]}, s{sRow}")
        e(f"v_add_u32 v{tok[m]}, s{G.sT}, v{G.i}")
    e("s_waitcnt lgkmcnt(3)")
    for t in range(3):
        for r in range(4): e(f"v_add_f32 v{cs[t]+r}, v{cs[t]+r}, v{kv[t]+r}")
    e("s_waitcnt lgkmcnt(0)")
    for m in range(NM):
        for t in range(3):
            for r in (0, 2):
                a = G.acc[m][t] + r
                e(f"v_pk_fma_f32 {vr(a,2)}, {vr(cs[t]+r,2)}, {vr(mr[m],2)}, {vr(a,2)} op_sel:[0,0,0] op_sel_hi:[1,0,1] neg_lo:[1,0,0] neg_hi:[1,0,0]")
            for r in (0, 2):
                a = G.acc[m][t] + r
                e(f"v_pk_mul_f32 {vr(a,2)}, {vr(a,2)}, {vr(mr[m],2)} op_sel:[0,1] op_sel_hi:[1,1]")
    core.stamp()
    e(f"s_cmp_eq_u32 s{sIsZ}, 1"); e("s_cbranch_scc1 L_k1_z")
    srd(SO, 12, 4*MB, WS_PHIQ); srd(SO2, 12, 2*MB, WS_KVP)
    e(f"s_mov_b32 s{sL}, {L2E}"); e(f"s_mov_b32 s68, {L2E}"); e(f"s_mov_b32 s69, {L2E}")
    for k in kv:
        for r in range(4): e(f"v_mov_b32 v{k+r}, 0")
    pk = [ta(2, 2) for _ in range(6)]
    e("s_waitcnt vmcnt(0)")
    e(f"v_lshl_or_b32 v{wph}, v{wph+1}, 16, v{wph}"); e(f"v_lshl_or_b32 v{wph+1}, v{wph+3}, 16, v{wph+2}")
    for m in range(NM):
        o = 3 * (m & 1)
        for t in range(3):
            a = G.acc[m][t]
            e(f"v_cvt_pk_bf16_f32 v{pk[o+t]}, v{a}, v{a+1}"); e(f"v_cvt_pk_bf16_f32 v{pk[o+t]+1}, v{a+2}, v{a+3}")
        e("s_nop 1")
        e(f"v_mfma_f32_16x16x16_bf16 {vr(G.acc[m][0],4)}, {vr(wph,2)}, {vr(pk[o],2)}, 0")
        e(f"v_mfma_f32_16x16x16_bf16 {vr(G.acc[m][1],4)}, {vr(wph,2)}, {vr(pk[o+1],2)}, 0")
        e(f"v_mfma_f32_16x16x16_bf16 {vr(G.acc[m][2],4)}, {vr(pk[o+2],2)}, {vr(idm,2)}, 0")
    e(f"s_and_b32 s3, s{sCT}, 7"); e("s_lshl_b32 s3, s3, 2"); e(f"s_add_u32 s3, s3, s{sWn}")
    e(f"s_lshl_b32 s{G.sT}, s3, 6")
    e(f"v_lshlrev_b32 v{tm[6]}, 4, v{G.g}"); e(f"v_add_u32 v{tm[6]}, s{G.sT}, v{tm[6]}")
    stb = ta(4, 2); st = [stb + k for k in range(4)]
    ex = [[ta(4, 4) for _ in range(2)] for _ in range(2)]
    tr = [ta(4, 4) for _ in range(2)]
    e("s_nop 4")
    for m in range(NM):
        for j in range(2):
            a = G.acc[m][j]
            e(f"v_max3_f32 v{st[j]}, v{a}, v{a+1}, v{a+2}"); e(f"v_max3_f32 v{st[2+j]}, -v{a}, -v{a+1}, -v{a+2}")
            e(f"v_max_f32 v{st[j]}, v{st[j]}, v{a+3}"); e(f"v_max_f32_e64 v{st[2+j]}, v{st[2+j]}, -v{a+3}")
        reduce4("v_max_f32", *st)
        e(f"v_mul_f32 v{st[0]}, s{sL}, v{st[0]}")
        bcast4(*st)
        for j in range(2):
            a = G.acc[m][j]
            for r in (0, 2):
                e(f"v_pk_fma_f32 {vr(ex[j][0]+r,2)}, {vr(a+r,2)}, s[68:69], {vr(stb,2)} op_sel:[0,0,{j}] op_sel_hi:[1,1,{j}] neg_lo:[0,0,1] neg_hi:[0,0,1]")
                e(f"v_pk_fma_f32 {vr(ex[j][1]+r,2)}, {vr(a+r,2)}, s[68:69], {vr(stb+2,2)} op_sel:[0,0,{j}] op_sel_hi:[1,1,{j}] neg_lo:[1,0,1] neg_hi:[1,0,1]")
        for j in range(2):
            for sg in range(2):
                for r in range(4): e(f"v_exp_f32 v{ex[j][sg]+r}, v{ex[j][sg]+r}")
        a = G.acc[m][2]
        e(f"v_cvt_pk_bf16_f32 v{pk[4]}, v{a}, v{a+1}"); e(f"v_cvt_pk_bf16_f32 v{pk[4]+1}, v{a+2}, v{a+3}")
        for j in range(2):
            for sg in range(2):
                b = ex[j][sg]; q = st[2*sg+j]
                tp = tm[2*sg]
                e(f"v_pk_add_f32 {vr(tp,2)}, {vr(b,2)}, {vr(b+2,2)}"); e(f"v_add_f32 v{q}, v{tp}, v{tp+1}")
        reduce4("v_add_f32", *st)
        e(f"v_rcp_f32 v{st[0]}, v{st[0]}")
        e(f"v_lshl_add_u32 v{tm[7]}, v{tok[m]}, 11, v{tm[6]}")
        bcast4(*st)
        for j in range(2):
            for sg in range(2):
                b = ex[j][sg]
                for r in (0, 2): e(f"v_pk_mul_f32 {vr(b+r,2)}, {vr(b+r,2)}, {vr(stb+2*sg,2)} op_sel:[0,{j}] op_sel_hi:[1,{j}]")
        a = G.acc[m][0]
        for sg in range(2):
            b = ex[0][sg]
            e(f"v_cvt_pk_bf16_f32 v{a+2*sg}, v{b}, v{b+1}"); e(f"v_cvt_pk_bf16_f32 v{a+2*sg+1}, v{b+2}, v{b+3}")
            b = ex[1][sg]
            e(f"v_cvt_pk_bf16_f32 v{pk[sg]}, v{b}, v{b+1}"); e(f"v_cvt_pk_bf16_f32 v{pk[sg]+1}, v{b+2}, v{b+3}")
        e(f"buffer_store_dwordx4 {vr(a,4)}, v{tm[7]}, {sr(SO,4)}, 0 offen")
        e("s_nop 0")
        for sg in range(2):
            e(f"v_mfma_f32_16x16x16_bf16 {vr(tr[sg],4)}, {vr(pk[sg],2)}, {vr(idm,2)}, 0")
        e("s_nop 7")
        for sg in range(2):
            b = tr[sg]
            e(f"v_cvt_pk_bf16_f32 v{pk[2+sg]}, v{b}, v{b+1}"); e(f"v_cvt_pk_bf16_f32 v{pk[2+sg]+1}, v{b+2}, v{b+3}")
        e("s_nop 1")
        for sg in range(2):
            e(f"v_mfma_f32_16x16x16_bf16 {vr(kv[sg],4)}, {vr(pk[2+sg],2)}, {vr(pk[4],2)}, {vr(kv[sg],4)}")
            e(f"v_mfma_f32_16x16x16_bf16 {vr(kv[2+sg],4)}, {vr(pk[2+sg],2)}, {vr(ones,2)}, {vr(kv[2+sg],4)}")
    core.stamp()
    e(f"s_lshl_b32 s{G.sT}, s{sWn}, 12"); e(f"v_lshlrev_b32 v{tm[0]}, 4, v{G.lane}"); e(f"v_add_u32 v{tm[0]}, s{G.sT}, v{tm[0]}")
    e(f"s_cmp_eq_u32 s{sWm}, 0"); e("s_cbranch_scc1 L_k1_kv0")
    e("s_nop 4")
    for q in range(4): e(f"ds_write_b128 v{tm[0]}, {vr(kv[q],4)} offset:{1024*q}")
    e("s_waitcnt lgkmcnt(0)"); e("s_barrier"); e("s_endpgm")
    lab("L_k1_kv0")
    e(f"s_lshl_b32 s{G.sT}, s{sRB}, 5"); e(f"s_add_u32 s3, s3, s{G.sT}")
    e(f"s_lshl_b32 s{G.sT}, s3, 11"); e("s_lshl_b32 s3, s3, 7"); e(f"s_add_u32 s3, s3, {WS_ZP-WS_KVP}")
    e("s_barrier")
    for q in range(4): e(f"ds_read_b128 {vr(ex[q>>1][q&1],4)}, v{tm[0]} offset:{1024*q}")
    e(f"v_lshlrev_b32 v{tm[0]}, 5, v{G.lane}"); e(f"v_lshlrev_b32 v{tm[1]}, 5, v{G.g}")
    e("s_waitcnt lgkmcnt(0)")
    for q in range(4):
        for r in range(4): e(f"v_add_f32 v{kv[q]+r}, v{kv[q]+r}, v{ex[q>>1][q&1]+r}")
    e(f"buffer_store_dwordx4 {vr(kv[0],4)}, v{tm[0]}, {sr(SO2,4)}, s{G.sT} offen")
    e(f"buffer_store_dwordx4 {vr(kv[1],4)}, v{tm[0]}, {sr(SO2,4)}, s{G.sT} offen offset:16")
    core.stamp_flush(0, 0)
    core._nst[0] -= 1
    e(f"v_cmp_eq_u32 vcc, 0, v{G.i}"); e("s_and_saveexec_b64 s[36:37], vcc")
    e(f"buffer_store_dwordx4 {vr(kv[2],4)}, v{tm[1]}, {sr(SO2,4)}, s3 offen")
    e(f"buffer_store_dwordx4 {vr(kv[3],4)}, v{tm[1]}, {sr(SO2,4)}, s3 offen offset:16")
    e("s_endpgm")
    lab("L_k1_z")
    c0 = -2.0 * 0.7978845608028654 * 1.4426950408889634
    e(f"v_mov_b32 v{tm[7]}, {f32(c0)}"); e(f"v_mov_b32 v{tm[6]}, {f32(c0*0.044715)}"); e(f"v_mov_b32 v{tm[4]}, 1.0")
    e(f"s_cmp_eq_u32 s{sZi}, 3"); e(f"s_cselect_b32 s{sNv}, 2, 3")
    for m in range(NM):
        for t in range(3):
            a = G.acc[m][t]
            for r in (0, 2): e(f"v_pk_mul_f32 {vr(tm[r],2)}, {vr(a+r,2)}, {vr(a+r,2)}")
            for r in (0, 2): e(f"v_pk_fma_f32 {vr(tm[r],2)}, {vr(tm[r],2)}, {vr(tm[6],2)}, {vr(tm[6],2)} op_sel:[0,0,1] op_sel_hi:[1,0,1]")
            for r in (0, 2): e(f"v_pk_mul_f32 {vr(tm[r],2)}, {vr(tm[r],2)}, {vr(a+r,2)}")
            for r in range(4): e(f"v_exp_f32 v{tm[r]}, v{tm[r]}")
            for r in (0, 2): e(f"v_pk_add_f32 {vr(tm[r],2)}, {vr(tm[r],2)}, {vr(tm[4],2)} op_sel:[0,0] op_sel_hi:[1,0]")
            for r in range(4): e(f"v_rcp_f32 v{tm[r]}, v{tm[r]}")
            for r in (0, 2): e(f"v_pk_mul_f32 {vr(a+r,2)}, {vr(tm[r],2)}, {vr(a+r,2)}")
    core.stamp()
    e(f"s_mul_i32 s{sColB}, s{sZi}, 176"); e(f"s_lshl_b32 s3, s{sWn}, 4"); e(f"s_add_u32 s{sColB}, s{sColB}, s3")
    e(f"s_bitcmp1_b32 s{sCT}, 2"); e("s_cbranch_scc1 L_k1_z2")
    srd(SO, 12, 2048*LDZ1, WS_Z1)
    e(f"s_lshl_b32 s3, s{sColB}, 1"); e(f"v_lshrrev_b32 v{tm[6]}, 1, v{G.g}"); e(f"v_lshlrev_b32 v{tm[6]}, 4, v{tm[6]}"); e(f"v_add_u32 v{tm[6]}, s3, v{tm[6]}")
    e(f"s_mov_b32 s3, {LDZ1}")
    e(f"v_and_b32 v{tm[5]}, 1, v{G.g}"); e(f"v_cmp_eq_u32 vcc, 1, v{tm[5]}"); e("s_nop 1")
    for P in range(2):
        e(f"v_cndmask_b32 v{tok[2*P]}, v{tok[2*P]}, v{tok[2*P+1]}, vcc")
        e(f"v_mad_u32_u24 v{tok[2*P]}, v{tok[2*P]}, s3, v{tm[6]}")
    for t in range(3):
        if t == 2: e(f"s_cmp_ge_u32 s{sWn}, s{sNv}"); e("s_cbranch_scc1 L_k1_end")
        pairstore([(G.acc[2*P][t], G.acc[2*P+1][t], f"v{tok[2*P]}, {sr(SO,4)}, 0 offen offset:{128*t}") for P in range(2)])
    e("s_endpgm")
    lab("L_k1_z2")
    srd(SO, 12, 688*4096, WS_Z2T); srd(SO2, 12, 65536, WS_STATS)
    e(f"s_cmp_lt_u32 s{sWn}, s{sNv}"); e("s_cbranch_scc1 L_k1_z2v")
    for m in range(NM):
        for r in range(4): e(f"v_mov_b32 v{G.acc[m][2]+r}, 0")
    lab("L_k1_z2v")
    for m in range(NM):
        l = [G.acc[m][t] + r for t in range(3) for r in (0, 2)]
        e(f"v_pk_add_f32 {vr(tm[0],2)}, {vr(l[0],2)}, {vr(l[1],2)}"); e(f"v_pk_mul_f32 {vr(tm[2],2)}, {vr(l[0],2)}, {vr(l[0],2)}")
        for x in l[2:]: e(f"v_pk_add_f32 {vr(tm[0],2)}, {vr(tm[0],2)}, {vr(x,2)}")
        for x in l[1:]: e(f"v_pk_fma_f32 {vr(tm[2],2)}, {vr(x,2)}, {vr(x,2)}, {vr(tm[2],2)}")
        e(f"v_add_f32 v{mr[m]}, v{tm[0]}, v{tm[1]}"); e(f"v_add_f32 v{mr[m]+1}, v{tm[2]}, v{tm[3]}")
    for h in range(2): reduce4("v_add_f32", mr[0]+h, mr[2]+h, mr[1]+h, mr[3]+h)
    e(f"s_lshl_b32 s3, s{sWn}, 10"); e(f"s_add_u32 s3, s3, {LZS}"); e(f"s_lshl_b32 s{G.sT}, s{sWm}, 9"); e(f"s_add_u32 s3, s3, s{G.sT}")
    e(f"v_add_u32 v{tm[5]}, s{sWn}, v{G.g}"); e(f"v_and_b32 v{tm[5]}, 3, v{tm[5]}"); e(f"v_lshl_add_u32 v{tm[5]}, v{tm[5]}, 4, v{G.i}")
    e(f"v_lshlrev_b32 v{tm[5]}, 3, v{tm[5]}"); e(f"v_add_u32 v{tm[5]}, s3, v{tm[5]}")
    e(f"ds_write_b64 v{tm[5]}, {vr(mr[0],2)}")
    for m in range(NM):
        for t in range(3):
            a = G.acc[m][t]
            e(f"v_cvt_pk_bf16_f32 v{pk[t]}, v{a}, v{a+1}"); e(f"v_cvt_pk_bf16_f32 v{pk[t]+1}, v{a+2}, v{a+3}")
        e("s_nop 1")
        for t in range(3): e(f"v_mfma_f32_16x16x16_bf16 {vr(G.acc[m][t],4)}, {vr(pk[t],2)}, {vr(idm,2)}, 0")
    e("s_waitcnt lgkmcnt(0)"); e("s_barrier")
    core.stamp()
    e(f"s_cmp_eq_u32 s{sWm}, 0"); e("s_cbranch_scc0 L_k1_z2s")
    e(f"v_lshlrev_b32 v{tm[5]}, 2, v0")
    e(f"v_add_u32 v{tm[6]}, {LZS}, v{tm[5]}")
    for w in range(4): e(f"ds_read_b32 v{tm[w]}, v{tm[6]} offset:{1024*w}")
    e(f"s_lshl_b32 s3, s{sZi}, 14"); e(f"s_lshl_b32 s{G.sT}, s{sRow}, 3"); e(f"s_add_u32 s3, s3, s{G.sT}")
    e("s_waitcnt lgkmcnt(0)")
    e(f"v_add_f32 v{tm[0]}, v{tm[0]}, v{tm[1]}"); e(f"v_add_f32 v{tm[2]}, v{tm[2]}, v{tm[3]}"); e(f"v_add_f32 v{tm[0]}, v{tm[0]}, v{tm[2]}")
    e(f"buffer_store_dword v{tm[0]}, v{tm[5]}, {sr(SO2,4)}, s3 offen")
    lab("L_k1_z2s")
    e(f"v_add_u32 v{tm[6]}, s{sColB}, v{G.i}"); e(f"v_lshlrev_b32 v{tm[6]}, 12, v{tm[6]}")
    e(f"v_lshrrev_b32 v{tm[5]}, 1, v{G.g}"); e(f"v_lshl_add_u32 v{tm[6]}, v{tm[5]}, 4, v{tm[6]}")
    e(f"s_lshl_b32 s{G.sT}, s{sWm}, 6"); e(f"s_add_u32 s{G.sT}, s{G.sT}, s{sRow}"); e(f"s_lshl_b32 s{G.sT}, s{G.sT}, 1")
    e(f"v_add_u32 v{tm[6]}, s{G.sT}, v{tm[6]}")
    e(f"v_and_b32 v{tm[5]}, 1, v{G.g}"); e(f"v_add_u32 v{tm[5]}, s{sWn}, v{tm[5]}")
    for P in range(2):
        e(f"v_add_u32 v{tm[4]}, {2*P}, v{tm[5]}"); e(f"v_and_b32 v{tm[4]}, 3, v{tm[4]}")
        e(f"v_lshl_add_u32 v{tok[P]}, v{tm[4]}, 5, v{tm[6]}")
    for t in range(3):
        if t == 2: e(f"s_cmp_ge_u32 s{sWn}, s{sNv}"); e("s_cbranch_scc1 L_k1_end")
        e(f"s_mov_b32 s3, {64*4096*t}")
        for P in range(2):
            a = G.acc[2*P][t]; b = G.acc[2*P+1][t]
            e(f"v_cvt_pk_bf16_f32 v{a}, v{a}, v{a+1}"); e(f"v_cvt_pk_bf16_f32 v{a+1}, v{a+2}, v{a+3}")
            e(f"v_cvt_pk_bf16_f32 v{a+2}, v{b}, v{b+1}"); e(f"v_cvt_pk_bf16_f32 v{a+3}, v{b+2}, v{b+3}")
        e("s_nop 1")
        for P in range(2):
            a = G.acc[2*P][t]
            e(f"v_permlane16_swap_b32 v{a}, v{a+2}"); e(f"v_permlane16_swap_b32 v{a+1}, v{a+3}")
        e("s_nop 0")
        for P in range(2): e(f"buffer_store_dwordx4 {vr(G.acc[2*P][t],4)}, v{tok[P]}, {sr(SO,4)}, s3 offen")
    core.stamp_flush(12, 8)
    lab("L_k1_end")
    e("s_endpgm")
    assert ta.n <= G.fr0 + G.frn, (ta.n, G.fr0 + G.frn)
    return va.n, G.stage * G.S
```

```python
from core import *
import core
from k1 import f32

def ojob():
    va = Alloc(1)
    class G: pass
    G.lane, G.g, G.i, G.t0, G.t1, G.t2 = [va() for _ in range(6)]
    G.sW, G.sT, sH, SO, LX = 40, 41, 42, 24, 0
    kvp = [va(8, 4) for _ in range(4)]; zp = va(8, 4); akv = va(4, 4); az = va(4, 4)
    ph = [va(4, 4) for _ in range(4)]; oad = va(); lad = va()
    e(f"v_and_b32 v{G.lane}, 63, v0"); e(f"v_lshrrev_b32 v{G.t0}, 6, v0"); e(f"v_lshrrev_b32 v{G.g}, 4, v{G.lane}")
    e(f"v_readfirstlane_b32 s40, v{G.t0}"); e(f"v_and_b32 v{G.i}, 15, v{G.lane}")
    e("s_waitcnt lgkmcnt(0)")
    srd(SO, 12, 2048*LDA4, WS_A4)
    SK, SQ = 16, 20
    def mid():
        srd(SK, 12, 2*MB, WS_KVP); srd(SQ, 12, 4*MB, WS_PHIQ)
        e(f"s_and_b32 s{sH}, s44, 7"); e(f"s_lshl_b32 s{sH}, s{sH}, 2"); e("s_bfe_u32 s3, s44, 0x20003"); e(f"s_add_u32 s{sH}, s{sH}, s3"); e(f"s_lshl_b32 s3, s{G.sW}, 18"); e(f"s_lshl_b32 s{G.sT}, s{sH}, 11"); e(f"s_add_u32 s3, s3, s{G.sT}")
        e(f"v_lshlrev_b32 v{G.t0}, 5, v{G.lane}")
        for rb in range(4):
            e(f"buffer_load_dwordx4 {vr(kvp[rb],4)}, v{G.t0}, {sr(SK,4)}, s3 offen")
            e(f"buffer_load_dwordx4 {vr(kvp[rb]+4,4)}, v{G.t0}, {sr(SK,4)}, s3 offen offset:16")
            if rb < 3: e("s_add_u32 s3, s3, 65536")
        e(f"v_lshlrev_b32 v{G.t1}, 12, v{G.i}"); e(f"v_lshl_add_u32 v{G.t1}, v{G.g}, 5, v{G.t1}")
        e(f"s_lshl_b32 s3, s{sH}, 7"); e(f"s_add_u32 s3, s3, {WS_ZP-WS_KVP}")
        e(f"buffer_load_dwordx4 {vr(zp,4)}, v{G.t1}, {sr(SK,4)}, s3 offen")
        e(f"buffer_load_dwordx4 {vr(zp+4,4)}, v{G.t1}, {sr(SK,4)}, s3 offen offset:16")
        e(f"s_lshr_b32 s3, s44, 5"); e("s_lshl_b32 s3, s3, 2"); e(f"s_add_u32 s3, s3, s{G.sW}"); e("s_lshl_b32 s3, s3, 6")
        e(f"v_add_u32 v{G.t2}, s3, v{G.i}")
        e(f"v_lshlrev_b32 v{G.t1}, 11, v{G.t2}"); e(f"v_lshl_add_u32 v{G.t1}, v{G.g}, 4, v{G.t1}")
        e(f"s_lshl_b32 s3, s{sH}, 6")
        for m in range(4):
            e(f"buffer_load_dwordx4 {vr(ph[m],4)}, v{G.t1}, {sr(SQ,4)}, s3 offen")
            if m < 3: e("s_add_u32 s3, s3, 32768")
        e(f"s_mov_b32 s3, {LDA4}"); e(f"v_lshrrev_b32 v{G.t1}, 1, v{G.g}"); e(f"v_lshlrev_b32 v{G.t1}, 4, v{G.t1}")
        e(f"v_and_b32 v{G.t0}, 1, v{G.g}"); e(f"v_lshl_add_u32 v{G.t2}, v{G.t0}, 4, v{G.t2}")
        e(f"v_mad_u32_u24 v{oad}, v{G.t2}, s3, v{G.t1}")
        e(f"v_lshlrev_b32 v{lad}, 4, v{G.lane}"); e(f"v_add_u32 v{lad}, {LX}, v{lad}")
    def pre():
        e(f"s_lshl_b32 s3, s{G.sW}, 11"); e(f"v_add_u32 v{G.t0}, s3, v{lad}")
        e("s_waitcnt vmcnt(6)")
        for r in range(8):
            e(f"v_add_f32 v{kvp[0]+r}, v{kvp[0]+r}, v{kvp[1]+r}"); e(f"v_add_f32 v{kvp[2]+r}, v{kvp[2]+r}, v{kvp[3]+r}")
        for r in range(8): e(f"v_add_f32 v{kvp[0]+r}, v{kvp[0]+r}, v{kvp[2]+r}")
        e(f"ds_write_b128 v{G.t0}, {vr(kvp[0],4)}"); e(f"ds_write_b128 v{G.t0}, {vr(kvp[0]+4,4)} offset:1024")
        e("s_waitcnt vmcnt(4)")
        for st in (8, 4, 2, 1):
            for r in range(8): e(f"v_add_f32_dpp v{zp+r}, v{zp+r}, v{zp+r} row_ror:{st} row_mask:0xf bank_mask:0xf")
        for r in range(4): e(f"v_cvt_pk_bf16_f32 v{az+r}, v{zp+2*r}, v{zp+2*r+1}")
        e("s_waitcnt lgkmcnt(0)")
    def post():
        for w in range(4):
            e(f"ds_read_b128 {vr(kvp[w],4)}, v{lad} offset:{2048*w}"); e(f"ds_read_b128 {vr(kvp[w]+4,4)}, v{lad} offset:{2048*w+1024}")
        e("s_waitcnt lgkmcnt(0)")
        for r in range(8):
            e(f"v_add_f32 v{kvp[0]+r}, v{kvp[0]+r}, v{kvp[1]+r}"); e(f"v_add_f32 v{kvp[2]+r}, v{kvp[2]+r}, v{kvp[3]+r}")
        for r in range(8): e(f"v_add_f32 v{kvp[0]+r}, v{kvp[0]+r}, v{kvp[2]+r}")
        for r in range(4): e(f"v_cvt_pk_bf16_f32 v{akv+r}, v{kvp[0]+2*r}, v{kvp[0]+2*r+1}")
        e(f"s_lshl_b32 s3, s{sH}, 5")
        e("s_waitcnt vmcnt(0)")
        for m in range(4):
            n = kvp[m]
            e(f"v_mfma_f32_16x16x32_bf16 {vr(n,4)}, {vr(akv,4)}, {vr(ph[m],4)}, 0")
            e(f"v_mfma_f32_16x16x32_bf16 {vr(n+4,4)}, {vr(az,4)}, {vr(ph[m],4)}, 0")
        e("s_nop 7")
        for m in range(4): e(f"v_add_f32 v{kvp[m]+4}, {f32(1e-6)}, v{kvp[m]+4}")
        for m in range(4): e(f"v_rcp_f32 v{kvp[m]+4}, v{kvp[m]+4}")
        for m in range(4):
            n = kvp[m]
            for r in range(4): e(f"v_mul_f32 v{n+r}, v{n+4}, v{n+r}")
        e(f"s_add_u32 s{G.sT}, s3, {32*LDA4}")
        pairstore([(kvp[0], kvp[1], f"v{oad}, {sr(SO,4)}, s3 offen"), (kvp[2], kvp[3], f"v{oad}, {sr(SO,4)}, s{G.sT} offen")])
    mid(); pre(); e("s_barrier"); post(); e("s_endpgm")
    return va.n

def k2():
    lab("k2_kernel")
    e("s_cmp_ge_u32 s2, 384"); e("s_cbranch_scc1 L_k2_end")
    e("s_load_dwordx2 s[12:13], s[0:1], 88")
    e("s_cmp_lt_u32 s2, 128"); e("s_cbranch_scc1 L_k2_ln")
    e("s_sub_u32 s44, s2, 128")
    n1 = ojob()
    lab("L_k2_ln")
    va = Alloc(1)
    tl, fr, t0, t1 = [va() for _ in range(4)]
    stt = [va(16, 4) for _ in range(4)]
    d = [va(4, 4) for _ in range(6)]
    ad = [va() for _ in range(6)]
    u = [va() for _ in range(8)]
    SS, SI, SO = 16, 20, 24
    e("s_mov_b32 s40, s2"); e("s_and_b32 s41, s40, 7"); e("s_lshr_b32 s42, s40, 3")
    e(f"v_and_b32 v{tl}, 31, v0"); e(f"v_lshrrev_b32 v{fr}, 5, v0")
    e("s_waitcnt lgkmcnt(0)")
    srd(SS, 12, 65536, WS_STATS); srd(SI, 12, 688*4096, WS_Z2T); srd(SO, 12, 688*4096, WS_Z2NT)
    e(f"v_lshlrev_b32 v{t0}, 6, v{tl}"); e("s_lshl_b32 s43, s41, 11")
    for z in range(4):
        for q in range(4): e(f"buffer_load_dwordx4 {vr(stt[z]+4*q,4)}, v{t0}, {sr(SS,4)}, s43 offen offset:{16*q}")
        e("s_add_u32 s43, s43, 16384")
    e("s_mul_i32 s42, s42, 43"); e(f"v_add_u32 v{t0}, s42, v{fr}"); e(f"v_lshlrev_b32 v{t0}, 12, v{t0}")
    e(f"v_lshl_add_u32 v{t0}, v{tl}, 4, v{t0}"); e("s_lshl_b32 s43, s41, 9")
    for it in range(6): e(f"v_add_u32 v{ad[it]}, {8*4096*it}, v{t0}")
    e(f"v_cmp_gt_u32 vcc, 3, v{fr}"); e(f"v_mov_b32 v{t1}, 0x7f000000"); e("s_nop 0")
    e(f"v_cndmask_b32 v{ad[5]}, v{t1}, v{ad[5]}, vcc")
    for it in range(6): e(f"buffer_load_dwordx4 {vr(d[it],4)}, v{ad[it]}, {sr(SI,4)}, s43 offen")
    e("s_waitcnt vmcnt(6)")
    e(f"s_mov_b32 s44, {f32(1/688)}")
    for r in range(16):
        e(f"v_add_f32 v{stt[0]+r}, v{stt[0]+r}, v{stt[1]+r}"); e(f"v_add_f32 v{stt[2]+r}, v{stt[2]+r}, v{stt[3]+r}")
        e(f"v_add_f32 v{stt[0]+r}, v{stt[0]+r}, v{stt[2]+r}"); e(f"v_mul_f32 v{stt[0]+r}, s44, v{stt[0]+r}")
    for k in range(8):
        a = stt[0] + 2*k
        e(f"v_fma_f32 v{a+1}, -v{a}, v{a}, v{a+1}"); e(f"v_max_f32 v{a+1}, 0, v{a+1}")
        e(f"v_add_f32 v{a+1}, {f32(1e-5)}, v{a+1}"); e(f"v_rsq_f32 v{a+1}, v{a+1}"); e("s_nop 0")
        e(f"v_mul_f32 v{a}, v{a}, v{a+1}")
    for it in range(6):
        e(f"s_waitcnt vmcnt({5})")
        for q in range(4):
            e(f"v_lshlrev_b32 v{u[2*q]}, 16, v{d[it]+q}"); e(f"v_and_b32 v{u[2*q+1]}, 0xffff0000, v{d[it]+q}")
        for k in range(8): e(f"v_fma_f32 v{u[k]}, v{u[k]}, v{stt[0]+2*k+1}, -v{stt[0]+2*k}")
        for q in range(4): e(f"v_cvt_pk_bf16_f32 v{d[it]+q}, v{u[2*q]}, v{u[2*q+1]}")
        e(f"buffer_store_dwordx4 {vr(d[it],4)}, v{ad[it]}, {sr(SO,4)}, s43 offen")
    lab("L_k2_end")
    e("s_endpgm")
    return max(n1, va.n), 8192

def tilemap(sRow, sCT):
    e("s_and_b32 s3, s2, 7"); e("s_lshl_b32 s3, s3, 2"); e(f"s_lshr_b32 s{sRow}, s2, 6"); e(f"s_add_u32 s{sRow}, s{sRow}, s3")
    e(f"s_lshl_b32 s{sRow}, s{sRow}, 6"); e(f"s_bfe_u32 s{sCT}, s2, 0x30003")

def k3(S=6):
    va, sa = Alloc(1), Alloc(40)
    G = Gemm("k3", va, sa, 64, 'dir', 96, S, 32, 2, 3)
    zq = [va(4, 4) for _ in range(3)]; z1 = [[zq[t] + 2*m for t in range(3)] for m in range(2)]
    bs = [va() for _ in range(2)]; ua = [va() for _ in range(2)]
    G.alloc_tail(va)
    sRow, sCT, sCol, sM, sN, sH = [sa() for _ in range(6)]
    SA, SB, SZ, SBS, SO = 16, 20, 24, 28, 32
    lab("k3_kernel")
    e("s_cmp_ge_u32 s2, 256"); e("s_cbranch_scc1 L_k3_end")
    e("s_load_dwordx2 s[4:5], s[0:1], 48"); e("s_load_dwordx2 s[6:7], s[0:1], 56"); e("s_load_dwordx2 s[12:13], s[0:1], 88")
    core.stamp_reset(); core.stamp()
    G.setup_lane()
    tilemap(sRow, sCT)
    e(f"s_mul_i32 s{sCol}, s{sCT}, 96"); e(f"s_mul_i32 s3, s{sCT}, 80"); e("s_add_u32 s3, s3, 64")
    e(f"s_min_u32 s{sCol}, s{sCol}, s3")
    e(f"s_and_b32 s{sM}, s{G.sW}, 1"); e(f"s_lshl_b32 s{sM}, s{sM}, 5")
    e(f"s_lshr_b32 s{sN}, s{G.sW}, 1"); e(f"s_mul_i32 s{sN}, s{sN}, 48")
    e("s_waitcnt lgkmcnt(0)")
    e(f"s_cmp_lt_u32 s{G.sW}, 4"); e("s_cbranch_scc1 L_k3_c")
    e(f"s_sub_u32 s{G.sW}, s{G.sW}, 4")
    srd(SA, 4, 2048*4096); srd(SB, 12, 688*4096, WS_Z2NT)
    G.setup_dir_dma(G.vA, 4096, sRow)
    G.setup_dir_dma(G.vB, 4096, sCol)
    e(f"s_mov_b32 s{G.sKa}, 0")
    G.sKb = G.sKa
    G.loader(SA, SB, lambda: e(f"s_add_u32 s{G.sKa}, s{G.sKa}, 128"))
    lab("L_k3_c")
    srd(SZ, 12, 2048*LDZ1, WS_Z1); srd(SBS, 6, 4096); srd(SO, 12, 2048*LDA4, WS_A4)
    e(f"s_add_u32 s3, s{sRow}, s{sM}"); e(f"v_add_u32 v{G.t0}, s3, v{G.i}")
    e(f"v_lshlrev_b32 v{G.t1}, 1, v{G.t0}")
    e(f"buffer_load_ushort v{bs[0]}, v{G.t1}, {sr(SBS,4)}, 0 offen"); e(f"buffer_load_ushort v{bs[1]}, v{G.t1}, {sr(SBS,4)}, 0 offen offset:32")
    e(f"s_add_u32 s3, s{sCol}, s{sN}"); e("s_lshl_b32 s3, s3, 1")
    e(f"v_lshrrev_b32 v{G.t1}, 1, v{G.g}"); e(f"v_lshlrev_b32 v{G.t1}, 4, v{G.t1}"); e(f"v_add_u32 v{G.t1}, s3, v{G.t1}")
    e(f"v_and_b32 v{G.t2}, 1, v{G.g}"); e(f"v_lshl_add_u32 v{G.t0}, v{G.t2}, 4, v{G.t0}")
    e(f"s_mov_b32 s3, {LDZ1}"); e(f"v_mad_u32_u24 v{G.t2}, v{G.t0}, s3, v{G.t1}")
    e(f"s_mov_b32 s3, {LDA4}"); e(f"v_mad_u32_u24 v{ua[0]}, v{G.t0}, s3, v{G.t1}")
    for t in range(3): e(f"buffer_load_dwordx4 {vr(zq[t],4)}, v{G.t2}, {sr(SZ,4)}, 0 offen offset:{32*t}")
    G.setup_reads([sM], sN, 0)
    G.run()
    e("s_waitcnt vmcnt(0)")
    for t in range(3): e(f"v_permlane16_swap_b32 v{zq[t]}, v{zq[t]+2}"); e(f"v_permlane16_swap_b32 v{zq[t]+1}, v{zq[t]+3}")
    e(f"s_add_u32 s3, s{sCol}, s{sN}"); e("s_cmp_eq_u32 s3, 672"); e("s_cbranch_scc0 L_k3_np")
    for m in range(2): e(f"v_mov_b32 v{z1[m][1]}, 0"); e(f"v_mov_b32 v{z1[m][1]+1}, 0")
    lab("L_k3_np")
    for m in range(2): e(f"v_lshlrev_b32 v{bs[m]}, 16, v{bs[m]}")
    T = [G.t0, G.t1, G.t2, G.t3]
    for t in range(3):
        if t == 2:
            e(f"s_lshr_b32 s3, s{sCT}, 2"); e(f"s_lshr_b32 s{G.sT}, s{G.sW}, 1"); e(f"s_and_b32 s3, s3, s{G.sT}")
            e("s_cbranch_scc1 L_k3_end")
        for m in range(2):
            a = G.acc[m][t]; z = z1[m][t]
            e(f"v_lshlrev_b32 v{T[0]}, 16, v{z}"); e(f"v_and_b32 v{T[1]}, 0xffff0000, v{z}")
            e(f"v_lshlrev_b32 v{T[2]}, 16, v{z+1}"); e(f"v_and_b32 v{T[3]}, 0xffff0000, v{z+1}")
            for r in range(4): e(f"v_add_f32 v{a+r}, v{bs[m]}, v{a+r}")
            for r in range(4): e(f"v_mul_f32 v{a+r}, v{T[r]}, v{a+r}")
        pairstore([(G.acc[0][t], G.acc[1][t], f"v{ua[0]}, {sr(SO,4)}, 0 offen offset:{1024+32*t}")])
    core.stamp_flush(0, 0)
    lab("L_k3_end")
    e("s_endpgm")
    return va.n, G.stage * G.S

def k4(S=6):
    va, sa = Alloc(1), Alloc(40)
    G = Gemm("k4", va, sa, 64, 'tr', 128, S, 19, 2, 2)
    xq = [va(4, 4) for _ in range(2)]; xr = [[xq[t] + 2*m for t in range(2)] for m in range(2)]
    oa = va()
    G.alloc_tail(va)
    sRow, sCT, sM, sQ, sLd, sSeg, sColB = [sa() for _ in range(7)]
    SA, SB, SX, SO = 16, 20, 24, 28
    lab("k4_kernel")
    e("s_cmp_ge_u32 s2, 256"); e("s_cbranch_scc1 L_k4_end")
    e("s_load_dwordx2 s[4:5], s[0:1], 0"); e("s_load_dwordx2 s[6:7], s[0:1], 24"); e("s_load_dwordx2 s[8:9], s[0:1], 64")
    e("s_load_dwordx2 s[10:11], s[0:1], 72"); e("s_load_dwordx2 s[12:13], s[0:1], 88")
    core.stamp_reset(); core.stamp()
    G.setup_lane()
    tilemap(sRow, sCT)
    e(f"s_and_b32 s{sM}, s{G.sW}, 1"); e(f"s_lshl_b32 s{sM}, s{sM}, 5")
    e(f"s_and_b32 s{sQ}, s{G.sW}, 2")
    e(f"s_mov_b32 s{sLd}, 1024"); e(f"s_mov_b32 s{sSeg}, 0"); e(f"s_lshl_b32 s{sColB}, s{sCT}, 7")
    e("s_waitcnt lgkmcnt(0)")
    e(f"s_cmp_lt_u32 s{G.sW}, 4"); e("s_cbranch_scc1 L_k4_c")
    e(f"s_sub_u32 s{G.sW}, s{G.sW}, 4")
    srd(SA, 12, 2048*LDA4, WS_A4); srd(SB, 6, 512*1024)
    G.setup_dir_dma(G.vA, LDA4, sRow)
    G.setup_tr_dma(sLd, sSeg, sColB)
    e(f"s_mov_b32 s{G.sKa}, 0"); e(f"s_mov_b32 s{G.sKb}, 0")
    def advance():
        e(f"s_add_u32 s{G.sKa}, s{G.sKa}, 128"); e(f"s_add_u32 s{G.sKb}, s{G.sKb}, 65536")
        e(f"s_cmp_eq_u32 s{G.sCnt}, 8")
        e(f"s_cselect_b32 s{SB}, s8, s{SB}"); e(f"s_cselect_b32 s{SB+1}, s9, s{SB+1}")
        e(f"s_cselect_b32 s{SB+2}, {688*1024}, s{SB+2}"); e(f"s_cselect_b32 s{G.sKb}, 0, s{G.sKb}")
    G.loader(SA, SB, advance)
    lab("L_k4_c")
    srd(SX, 4, 2048*1024); srd(SO, 10, 2048*1024)
    e(f"s_add_u32 s3, s{sRow}, s{sM}"); e(f"v_add_u32 v{G.t0}, s3, v{G.i}")
    e(f"v_and_b32 v{G.t1}, 1, v{G.g}"); e(f"v_lshl_add_u32 v{G.t0}, v{G.t1}, 4, v{G.t0}"); e(f"v_lshlrev_b32 v{G.t0}, 10, v{G.t0}")
    e(f"s_lshl_b32 s3, s{sQ}, 5"); e(f"s_add_u32 s3, s3, s{sColB}")
    e(f"v_lshrrev_b32 v{G.t1}, 1, v{G.g}"); e(f"v_lshl_add_u32 v{G.t0}, v{G.t1}, 4, v{G.t0}"); e(f"v_add_u32 v{oa}, s3, v{G.t0}")
    for t in range(2): e(f"buffer_load_dwordx4 {vr(xq[t],4)}, v{oa}, {sr(SX,4)}, 0 offen offset:{32*t}")
    G.setup_reads([sM], sQ, 1)
    G.run()
    e("s_waitcnt vmcnt(0)")
    T = [G.t0, G.t1, G.t2, G.t3]
    for t in range(2): e(f"v_permlane16_swap_b32 v{xq[t]}, v{xq[t]+2}"); e(f"v_permlane16_swap_b32 v{xq[t]+1}, v{xq[t]+3}")
    e("s_nop 0")
    for t in range(2):
        for m in range(2):
            a = G.acc[m][t]; z = xr[m][t]
            e(f"v_lshlrev_b32 v{T[0]}, 16, v{z}"); e(f"v_and_b32 v{T[1]}, 0xffff0000, v{z}")
            e(f"v_lshlrev_b32 v{T[2]}, 16, v{z+1}"); e(f"v_and_b32 v{T[3]}, 0xffff0000, v{z+1}")
            for r in range(4): e(f"v_add_f32 v{a+r}, v{T[r]}, v{a+r}")
    pairstore([(G.acc[0][t], G.acc[1][t], f"v{oa}, {sr(SO,4)}, 0 offen offset:{32*t}") for t in range(2)])
    core.stamp_flush(0, 0)
    lab("L_k4_end")
    e("s_endpgm")
    return va.n, G.stage * G.S
```

```python
from core import *
import core
L2E = 0x3fb8aa3b
import struct
def f32(x): return struct.unpack('<I', struct.pack('<f', x))[0]

def k1():
    va, sa = Alloc(1), Alloc(40)
    NM = 4
    G = Gemm("k1", va, sa, 128, 'tr', 384, 3, 8, NM, 3, NC=8, rot=True)
    LDSX = 32768
    LCS, LZS = LDSX + 1024, LDSX + 2560
    cs = [va(4, 4) for _ in range(3)]
    ones = va(4, 4)
    rs = va(4, 4); gr = va(4, 4)
    ss = [rs, gr]
    wph = va(4, 2); idm = va(2, 2)
    G.alloc_tail(va)
    sRB, sCT, sRow, sLd, sSeg, sColB, sL, sIsZ, sZi = [sa() for _ in range(9)]
    sTok = [sa() for _ in range(4)]
    sC0, sC1, sNv, sWn, sWm = sa(), sa(), sa(), sa(), sa()
    SX, SW, SP, SO, SO2 = 16, 20, 24, 28, 32
    lab("k1_kernel")
    e("s_cmp_ge_u32 s2, 256"); e("s_cbranch_scc1 L_k1_end")
    e("s_load_dwordx2 s[4:5], s[0:1], 0"); e("s_load_dwordx2 s[6:7], s[0:1], 8")
    e("s_load_dwordx2 s[8:9], s[0:1], 16"); e("s_load_dwordx2 s[10:11], s[0:1], 40")
    e("s_load_dwordx2 s[12:13], s[0:1], 88")
    core.stamp_reset(); core.stamp()
    G.setup_lane()
    e(f"s_lshr_b32 s{sRB}, s2, 4"); e(f"s_and_b32 s{sCT}, s2, 15")
    e(f"s_lshl_b32 s{sRow}, s{sRB}, 7")
    e(f"s_lshr_b32 s{sIsZ}, s{sCT}, 3")
    e(f"s_and_b32 s{sZi}, s{sCT}, 3")
    e(f"s_cmp_lt_u32 s{G.sW}, 8"); e("s_cbranch_scc1 L_k1_c")
    e(f"s_sub_u32 s{G.sW}, s{G.sW}, 8")
    e("s_load_dwordx2 s[72:73], s[0:1], 48"); e("s_load_dwordx2 s[74:75], s[0:1], 24"); e("s_load_dwordx2 s[76:77], s[0:1], 64")
    e(f"s_mul_i32 s{sColB}, s{sZi}, 352")
    e(f"s_bfe_u32 s3, s{sCT}, 0x10002"); e("s_mul_i32 s3, s3, 1376")
    e(f"s_add_u32 s{sColB}, s{sColB}, s3")
    e(f"s_lshl_b32 s3, s{sCT}, 7")
    e(f"s_cmp_eq_u32 s{sIsZ}, 1")
    e(f"s_cselect_b32 s{sColB}, s{sColB}, s3")
    e(f"s_mov_b32 s{sLd}, 3072"); e(f"s_cselect_b32 s{sLd}, 2752, s{sLd}")
    e(f"s_cselect_b32 s{sSeg}, 0, 896")
    e(f"s_mov_b32 s{SW+2}, {512*3072}"); e(f"s_cselect_b32 s{SW+2}, {512*2752}, s{SW+2}"); e(f"s_mov_b32 s{SW+3}, 0x00020000")
    e("s_waitcnt lgkmcnt(0)")
    e(f"s_cselect_b32 s{SW}, s10, s6"); e(f"s_cselect_b32 s{SW+1}, s11, s7")
    srd(SX, 4, 2048*1024)
    G.setup_dir_dma(G.vA, 1024, sRow)
    G.setup_tr_dma(sLd, sSeg, sColB)
    e(f"s_mov_b32 s{G.sKa}, 0"); e(f"s_mov_b32 s{G.sKb}, 0")
    e(f"s_lshl_b32 s{sLd}, s{sLd}, 6")
    def advance():
        e(f"s_add_u32 s{G.sKa}, s{G.sKa}, 128"); e(f"s_add_u32 s{G.sKb}, s{G.sKb}, s{sLd}")
    def mid():
        srd(24, 72, 2048*4096); srd(28, 74, 512*1024); srd(32, 76, 688*1024)
        e(f"v_lshlrev_b32 v{G.t0}, 4, v{G.lane}")
        e("s_and_b32 s3, s2, 7"); e("s_lshl_b32 s3, s3, 20"); e(f"s_lshr_b32 s{G.sT}, s2, 3"); e(f"s_lshl_b32 s{G.sT}, s{G.sT}, 15")
        e(f"s_add_u32 s3, s3, s{G.sT}"); e(f"s_lshl_b32 s{G.sT}, s{G.sW}, 13"); e(f"s_add_u32 s3, s3, s{G.sT}")
        for k in range(8):
            e(f"buffer_load_dwordx4 {vr(G.fr0+4*k,4)}, v{G.t0}, s[24:27], s3 offen offset:{1024*(k&3)}")
            if k == 3: e("s_add_u32 s3, s3, 4096")
        e("s_lshl_b32 s3, s2, 2"); e(f"s_add_u32 s3, s3, s{G.sW}"); e("s_lshl_b32 s3, s3, 10")
        e(f"v_add_u32 v{G.t0}, s3, v{G.t0}")
        e(f"buffer_load_dwordx4 {vr(G.fr0+32,4)}, v{G.t0}, s[28:31], 0 offen")
        e(f"buffer_load_dwordx4 {vr(G.fr0+36,4)}, v{G.t0}, s[32:35], 0 offen")
    G.loader(SX, SW, advance, None, None, lambda: (mid(), e("s_barrier"), e("s_barrier")), 0)
    lab("L_k1_c")
    e(f"s_and_b32 s{sWn}, s{G.sW}, 3"); e(f"s_lshr_b32 s{sWm}, s{G.sW}, 2")
    e(f"s_lshl_b32 s3, s{sWm}, 6")
    for p in range(4):
        e(f"s_add_u32 s{sTok[p]}, s{sWn}, {p}"); e(f"s_and_b32 s{sTok[p]}, s{sTok[p]}, 3")
        e(f"s_lshl_b32 s{sTok[p]}, s{sTok[p]}, 4"); e(f"s_add_u32 s{sTok[p]}, s{sTok[p]}, s3")
    G.setup_reads(sTok, sWn, 4)
    e("s_waitcnt lgkmcnt(0)")
    srd(SP, 8, 32*512)
    pfd = va()
    srd(SX, 4, 2048*1024); srd(SW, 6, 512*3072); srd(SO, 10, 512*2752)
    e("s_lshl_b32 s3, s2, 3"); e(f"s_add_u32 s3, s3, s{G.sW}"); e("s_lshl_b32 s3, s3, 12")
    e(f"v_lshlrev_b32 v{G.t0}, 6, v{G.lane}"); e(f"v_add_u32 v{G.t0}, s3, v{G.t0}")
    e(f"v_subrev_u32 v{G.t1}, {512*4096}, v{G.t0}"); e(f"v_subrev_u32 v{G.t2}, {896*4096}, v{G.t0}")
    e(f"buffer_load_dword v{pfd}, v{G.t0}, {sr(SX,4)}, 0 offen")
    e(f"buffer_load_dword v{pfd}, v{G.t1}, {sr(SW,4)}, 0 offen")
    e(f"buffer_load_dword v{pfd}, v{G.t2}, {sr(SO,4)}, 0 offen")
    e(f"s_and_b32 s3, s{sCT}, 7"); e("s_lshl_b32 s3, s3, 2"); e(f"s_add_u32 s3, s3, s{sWn}"); e("s_lshl_b32 s3, s3, 9")
    e(f"v_lshlrev_b32 v{G.t0}, 7, v{G.g}"); e(f"v_lshl_add_u32 v{G.t0}, v{G.i}, 1, v{G.t0}")
    for r in range(4): e(f"buffer_load_ushort v{wph+r}, v{G.t0}, {sr(SP,4)}, s3 offen offset:{32*r}")
    for r in range(4): e(f"v_mov_b32 v{ones+r}, 0x3f803f80")
    for t in range(3):
        for r in range(4): e(f"v_mov_b32 v{cs[t]+r}, 0")
    for r in range(8): e(f"v_mov_b32 v{rs+r}, 0")
    e(f"v_lshlrev_b32 v{G.t0}, 2, v{G.g}"); e(f"v_sub_u32 v{G.t0}, v{G.i}, v{G.t0}")
    e(f"v_mov_b32 v{G.t1}, 0x3f80"); e(f"v_mov_b32 v{G.t2}, 0x3f800000")
    for q in range(2):
        e(f"v_cmp_eq_u32 vcc, {2*q}, v{G.t0}"); e("s_nop 1"); e(f"v_cndmask_b32 v{idm+q}, 0, v{G.t1}, vcc")
        e(f"v_cmp_eq_u32 vcc, {2*q+1}, v{G.t0}"); e("s_nop 1"); e(f"v_cndmask_b32 v{idm+q}, v{idm+q}, v{G.t2}, vcc")
    for r in range(4): e(f"v_cmp_eq_u32 s[{70+2*r}:{71+2*r}], {r}, v{G.t0}")
    def extra(hh):
        x = [f"v_mfma_f32_16x16x32_bf16 {vr(rs,4)}, {vr(ones,4)}, {vr(G.fa[hh][0],4)}, {vr(rs,4)}",
             f"v_mfma_f32_16x16x32_bf16 {vr(gr,4)}, {vr(G.fa[hh][0],4)}, {vr(G.fa[hh][0],4)}, {vr(gr,4)}"]
        x.append(f"s_cmp_eq_u32 s{sWm}, {hh}")
        x.append(f"s_cbranch_scc0 L_k1_cs{hh}")
        x += [f"v_mfma_f32_16x16x32_bf16 {vr(cs[t],4)}, {vr(G.fb[hh][t],4)}, {vr(ones,4)}, {vr(cs[t],4)}" for t in range(3)]
        x.append(f"L_k1_cs{hh}:")
        return x
    G.run(extra)
    ta = Alloc(G.fr0)
    tm = [ta() for _ in range(8)]
    mr = [ta(2, 2) for _ in range(NM)]
    tok = [ta() for _ in range(NM)]
    kv = [ta(4, 4) for _ in range(4)]
    e(f"s_mul_i32 s{G.sT}, s{G.sW}, 192"); e(f"s_add_u32 s{G.sT}, s{G.sT}, {LCS}")
    e(f"v_lshlrev_b32 v{tm[6]}, 4, v{G.g}"); e(f"v_add_u32 v{tm[6]}, s{G.sT}, v{tm[6]}")
    for t in range(3): e(f"ds_write_b128 v{tm[6]}, {vr(cs[t],4)} offset:{64*t}")
    e(f"v_cndmask_b32 v{gr}, 0, v{gr}, s[70:71]")
    for r in range(1, 4): e(f"v_cndmask_b32 v{gr}, v{gr}, v{gr+r}, s[{70+2*r}:{71+2*r}]")
    xreduce(["v_add_f32"], [gr], tm[:1])
    e(f"s_mov_b32 s3, {f32(1/512)}")
    e(f"v_lshlrev_b32 v{tm[4]}, 3, v{G.i}")
    e(f"s_lshl_b32 s{G.sT}, s{sTok[0]}, 3"); e(f"s_add_u32 s{G.sT}, s{G.sT}, {LDSX}")
    e(f"v_add_u32 v{tm[5]}, s{G.sT}, v{tm[4]}")
    a = mr[0]
    e(f"v_mul_f32 v{a}, s3, v{ss[0]}"); e(f"v_mul_f32 v{a+1}, s3, v{ss[1]}")
    e(f"v_fma_f32 v{a+1}, -v{a}, v{a}, v{a+1}"); e(f"v_max_f32 v{a+1}, 0, v{a+1}")
    e(f"v_add_f32 v{a+1}, {f32(1e-5)}, v{a+1}"); e(f"v_rsq_f32 v{a+1}, v{a+1}")
    e(f"s_xor_b32 s{G.sT}, s{G.sW}, 4"); e(f"s_mul_i32 s{G.sT}, s{G.sT}, 192"); e(f"s_add_u32 s{G.sT}, s{G.sT}, {LCS}")
    e(f"ds_write_b64 v{tm[5]}, {vr(a,2)}")
    e(f"v_lshlrev_b32 v{tm[6]}, 4, v{G.g}"); e(f"v_add_u32 v{tm[6]}, s{G.sT}, v{tm[6]}")
    for p in range(1, 4):
        e(f"s_lshl_b32 s{G.sT}, s{sTok[p]}, 3"); e(f"s_add_u32 s{G.sT}, s{G.sT}, {LDSX}")
        e(f"v_add_u32 v{tm[p]}, s{G.sT}, v{tm[4]}")
    e("s_waitcnt lgkmcnt(0)"); e("s_barrier")
    for t in range(3): e(f"ds_read_b128 {vr(kv[t],4)}, v{tm[6]} offset:{64*t}")
    for p in range(1, 4): e(f"ds_read_b64 {vr(mr[p],2)}, v{tm[p]}")
    for m in range(NM):
        e(f"s_add_u32 s{G.sT}, s{sTok[m]}, s{sRow}")
        e(f"v_add_u32 v{tok[m]}, s{G.sT}, v{G.i}")
    e("s_waitcnt lgkmcnt(3)")
    for t in range(3):
        for r in range(4): e(f"v_add_f32 v{cs[t]+r}, v{cs[t]+r}, v{kv[t]+r}")
    e("s_waitcnt lgkmcnt(0)")
    for m in range(NM):
        for t in range(3):
            for r in (0, 2):
                a = G.acc[m][t] + r
                e(f"v_pk_fma_f32 {vr(a,2)}, {vr(cs[t]+r,2)}, {vr(mr[m],2)}, {vr(a,2)} op_sel:[0,0,0] op_sel_hi:[1,0,1] neg_lo:[1,0,0] neg_hi:[1,0,0]")
            for r in (0, 2):
                a = G.acc[m][t] + r
                e(f"v_pk_mul_f32 {vr(a,2)}, {vr(a,2)}, {vr(mr[m],2)} op_sel:[0,1] op_sel_hi:[1,1]")
    core.stamp()
    e(f"s_cmp_eq_u32 s{sIsZ}, 1"); e("s_cbranch_scc1 L_k1_z")
    srd(SO, 12, 4*MB, WS_PHIQ); srd(SO2, 12, 2*MB, WS_KVP)
    e(f"s_mov_b32 s{sL}, {L2E}"); e(f"s_mov_b32 s68, {L2E}"); e(f"s_mov_b32 s69, {L2E}")
    for k in kv:
        for r in range(4): e(f"v_mov_b32 v{k+r}, 0")
    pk = [ta(2, 2) for _ in range(6)]
    e("s_waitcnt vmcnt(0)")
    e(f"v_lshl_or_b32 v{wph}, v{wph+1}, 16, v{wph}"); e(f"v_lshl_or_b32 v{wph+1}, v{wph+3}, 16, v{wph+2}")
    for m in range(NM):
        o = 3 * (m & 1)
        for t in range(3):
            a = G.acc[m][t]
            e(f"v_cvt_pk_bf16_f32 v{pk[o+t]}, v{a}, v{a+1}"); e(f"v_cvt_pk_bf16_f32 v{pk[o+t]+1}, v{a+2}, v{a+3}")
        e("s_nop 1")
        e(f"v_mfma_f32_16x16x16_bf16 {vr(G.acc[m][0],4)}, {vr(wph,2)}, {vr(pk[o],2)}, 0")
        e(f"v_mfma_f32_16x16x16_bf16 {vr(G.acc[m][1],4)}, {vr(wph,2)}, {vr(pk[o+1],2)}, 0")
        e(f"v_mfma_f32_16x16x16_bf16 {vr(G.acc[m][2],4)}, {vr(pk[o+2],2)}, {vr(idm,2)}, 0")
    e(f"s_and_b32 s3, s{sCT}, 7"); e("s_lshl_b32 s3, s3, 2"); e(f"s_add_u32 s3, s3, s{sWn}")
    e(f"s_lshl_b32 s{G.sT}, s3, 6")
    e(f"v_lshlrev_b32 v{tm[6]}, 4, v{G.g}"); e(f"v_add_u32 v{tm[6]}, s{G.sT}, v{tm[6]}")
    stb = ta(4, 2); st = [stb + k for k in range(4)]
    ex = [[ta(4, 4) for _ in range(2)] for _ in range(2)]
    tr = [ta(4, 4) for _ in range(2)]
    e("s_nop 4")
    for m in range(NM):
        for j in range(2):
            a = G.acc[m][j]
            e(f"v_max3_f32 v{st[j]}, v{a}, v{a+1}, v{a+2}"); e(f"v_max3_f32 v{st[2+j]}, -v{a}, -v{a+1}, -v{a+2}")
            e(f"v_max_f32 v{st[j]}, v{st[j]}, v{a+3}"); e(f"v_max_f32_e64 v{st[2+j]}, v{st[2+j]}, -v{a+3}")
        reduce4("v_max_f32", *st)
        e(f"v_mul_f32 v{st[0]}, s{sL}, v{st[0]}")
        bcast4(*st)
        for j in range(2):
            a = G.acc[m][j]
            for r in (0, 2):
                e(f"v_pk_fma_f32 {vr(ex[j][0]+r,2)}, {vr(a+r,2)}, s[68:69], {vr(stb,2)} op_sel:[0,0,{j}] op_sel_hi:[1,1,{j}] neg_lo:[0,0,1] neg_hi:[0,0,1]")
                e(f"v_pk_fma_f32 {vr(ex[j][1]+r,2)}, {vr(a+r,2)}, s[68:69], {vr(stb+2,2)} op_sel:[0,0,{j}] op_sel_hi:[1,1,{j}] neg_lo:[1,0,1] neg_hi:[1,0,1]")
        for j in range(2):
            for sg in range(2):
                for r in range(4): e(f"v_exp_f32 v{ex[j][sg]+r}, v{ex[j][sg]+r}")
        a = G.acc[m][2]
        e(f"v_cvt_pk_bf16_f32 v{pk[4]}, v{a}, v{a+1}"); e(f"v_cvt_pk_bf16_f32 v{pk[4]+1}, v{a+2}, v{a+3}")
        for j in range(2):
            for sg in range(2):
                b = ex[j][sg]; q = st[2*sg+j]
                tp = tm[2*sg]
                e(f"v_pk_add_f32 {vr(tp,2)}, {vr(b,2)}, {vr(b+2,2)}"); e(f"v_add_f32 v{q}, v{tp}, v{tp+1}")
        reduce4("v_add_f32", *st)
        e(f"v_rcp_f32 v{st[0]}, v{st[0]}")
        e(f"v_lshl_add_u32 v{tm[7]}, v{tok[m]}, 11, v{tm[6]}")
        bcast4(*st)
        for j in range(2):
            for sg in range(2):
                b = ex[j][sg]
                for r in (0, 2): e(f"v_pk_mul_f32 {vr(b+r,2)}, {vr(b+r,2)}, {vr(stb+2*sg,2)} op_sel:[0,{j}] op_sel_hi:[1,{j}]")
        a = G.acc[m][0]
        for sg in range(2):
            b = ex[0][sg]
            e(f"v_cvt_pk_bf16_f32 v{a+2*sg}, v{b}, v{b+1}"); e(f"v_cvt_pk_bf16_f32 v{a+2*sg+1}, v{b+2}, v{b+3}")
            b = ex[1][sg]
            e(f"v_cvt_pk_bf16_f32 v{pk[sg]}, v{b}, v{b+1}"); e(f"v_cvt_pk_bf16_f32 v{pk[sg]+1}, v{b+2}, v{b+3}")
        e(f"buffer_store_dwordx4 {vr(a,4)}, v{tm[7]}, {sr(SO,4)}, 0 offen")
        e("s_nop 0")
        for sg in range(2):
            e(f"v_mfma_f32_16x16x16_bf16 {vr(tr[sg],4)}, {vr(pk[sg],2)}, {vr(idm,2)}, 0")
        e("s_nop 7")
        for sg in range(2):
            b = tr[sg]
            e(f"v_cvt_pk_bf16_f32 v{pk[2+sg]}, v{b}, v{b+1}"); e(f"v_cvt_pk_bf16_f32 v{pk[2+sg]+1}, v{b+2}, v{b+3}")
        e("s_nop 1")
        for sg in range(2):
            e(f"v_mfma_f32_16x16x16_bf16 {vr(kv[sg],4)}, {vr(pk[2+sg],2)}, {vr(pk[4],2)}, {vr(kv[sg],4)}")
            e(f"v_mfma_f32_16x16x16_bf16 {vr(kv[2+sg],4)}, {vr(pk[2+sg],2)}, {vr(ones,2)}, {vr(kv[2+sg],4)}")
    core.stamp()
    e(f"s_lshl_b32 s{G.sT}, s{sWn}, 12"); e(f"v_lshlrev_b32 v{tm[0]}, 4, v{G.lane}"); e(f"v_add_u32 v{tm[0]}, s{G.sT}, v{tm[0]}")
    e(f"s_cmp_eq_u32 s{sWm}, 0"); e("s_cbranch_scc1 L_k1_kv0")
    e("s_nop 4")
    for q in range(4): e(f"ds_write_b128 v{tm[0]}, {vr(kv[q],4)} offset:{1024*q}")
    e("s_waitcnt lgkmcnt(0)"); e("s_barrier"); e("s_endpgm")
    lab("L_k1_kv0")
    e(f"s_lshl_b32 s{G.sT}, s{sRB}, 5"); e(f"s_add_u32 s3, s3, s{G.sT}")
    e(f"s_lshl_b32 s{G.sT}, s3, 11"); e("s_lshl_b32 s3, s3, 7"); e(f"s_add_u32 s3, s3, {WS_ZP-WS_KVP}")
    e("s_barrier")
    for q in range(4): e(f"ds_read_b128 {vr(ex[q>>1][q&1],4)}, v{tm[0]} offset:{1024*q}")
    e(f"v_lshlrev_b32 v{tm[0]}, 5, v{G.lane}"); e(f"v_lshlrev_b32 v{tm[1]}, 5, v{G.g}")
    e("s_waitcnt lgkmcnt(0)")
    for q in range(4):
        for r in range(4): e(f"v_add_f32 v{kv[q]+r}, v{kv[q]+r}, v{ex[q>>1][q&1]+r}")
    e(f"buffer_store_dwordx4 {vr(kv[0],4)}, v{tm[0]}, {sr(SO2,4)}, s{G.sT} offen")
    e(f"buffer_store_dwordx4 {vr(kv[1],4)}, v{tm[0]}, {sr(SO2,4)}, s{G.sT} offen offset:16")
    core.stamp_flush(0, 0)
    core._nst[0] -= 1
    e(f"v_cmp_eq_u32 vcc, 0, v{G.i}"); e("s_and_saveexec_b64 s[36:37], vcc")
    e(f"buffer_store_dwordx4 {vr(kv[2],4)}, v{tm[1]}, {sr(SO2,4)}, s3 offen")
    e(f"buffer_store_dwordx4 {vr(kv[3],4)}, v{tm[1]}, {sr(SO2,4)}, s3 offen offset:16")
    e("s_endpgm")
    lab("L_k1_z")
    c0 = -2.0 * 0.7978845608028654 * 1.4426950408889634
    e(f"v_mov_b32 v{tm[7]}, {f32(c0)}"); e(f"v_mov_b32 v{tm[6]}, {f32(c0*0.044715)}"); e(f"v_mov_b32 v{tm[4]}, 1.0")
    e(f"s_cmp_eq_u32 s{sZi}, 3"); e(f"s_cselect_b32 s{sNv}, 2, 3")
    for m in range(NM):
        for t in range(3):
            a = G.acc[m][t]
            for r in (0, 2): e(f"v_pk_mul_f32 {vr(tm[r],2)}, {vr(a+r,2)}, {vr(a+r,2)}")
            for r in (0, 2): e(f"v_pk_fma_f32 {vr(tm[r],2)}, {vr(tm[r],2)}, {vr(tm[6],2)}, {vr(tm[6],2)} op_sel:[0,0,1] op_sel_hi:[1,0,1]")
            for r in (0, 2): e(f"v_pk_mul_f32 {vr(tm[r],2)}, {vr(tm[r],2)}, {vr(a+r,2)}")
            for r in range(4): e(f"v_exp_f32 v{tm[r]}, v{tm[r]}")
            for r in (0, 2): e(f"v_pk_add_f32 {vr(tm[r],2)}, {vr(tm[r],2)}, {vr(tm[4],2)} op_sel:[0,0] op_sel_hi:[1,0]")
            for r in range(4): e(f"v_rcp_f32 v{tm[r]}, v{tm[r]}")
            for r in (0, 2): e(f"v_pk_mul_f32 {vr(a+r,2)}, {vr(tm[r],2)}, {vr(a+r,2)}")
    core.stamp()
    e(f"s_mul_i32 s{sColB}, s{sZi}, 176"); e(f"s_lshl_b32 s3, s{sWn}, 4"); e(f"s_add_u32 s{sColB}, s{sColB}, s3")
    e(f"s_bitcmp1_b32 s{sCT}, 2"); e("s_cbranch_scc1 L_k1_z2")
    srd(SO, 12, 2048*LDZ1, WS_Z1)
    e(f"s_lshl_b32 s3, s{sColB}, 1"); e(f"v_lshrrev_b32 v{tm[6]}, 1, v{G.g}"); e(f"v_lshlrev_b32 v{tm[6]}, 4, v{tm[6]}"); e(f"v_add_u32 v{tm[6]}, s3, v{tm[6]}")
    e(f"s_mov_b32 s3, {LDZ1}")
    e(f"v_and_b32 v{tm[5]}, 1, v{G.g}"); e(f"v_cmp_eq_u32 vcc, 1, v{tm[5]}"); e("s_nop 1")
    for P in range(2):
        e(f"v_cndmask_b32 v{tok[2*P]}, v{tok[2*P]}, v{tok[2*P+1]}, vcc")
        e(f"v_mad_u32_u24 v{tok[2*P]}, v{tok[2*P]}, s3, v{tm[6]}")
    for t in range(3):
        if t == 2: e(f"s_cmp_ge_u32 s{sWn}, s{sNv}"); e("s_cbranch_scc1 L_k1_end")
        pairstore([(G.acc[2*P][t], G.acc[2*P+1][t], f"v{tok[2*P]}, {sr(SO,4)}, 0 offen offset:{128*t}") for P in range(2)])
    e("s_endpgm")
    lab("L_k1_z2")
    srd(SO, 12, 688*4096, WS_Z2T); srd(SO2, 12, 65536, WS_STATS)
    e(f"s_cmp_lt_u32 s{sWn}, s{sNv}"); e("s_cbranch_scc1 L_k1_z2v")
    for m in range(NM):
        for r in range(4): e(f"v_mov_b32 v{G.acc[m][2]+r}, 0")
    lab("L_k1_z2v")
    for m in range(NM):
        l = [G.acc[m][t] + r for t in range(3) for r in (0, 2)]
        e(f"v_pk_add_f32 {vr(tm[0],2)}, {vr(l[0],2)}, {vr(l[1],2)}"); e(f"v_pk_mul_f32 {vr(tm[2],2)}, {vr(l[0],2)}, {vr(l[0],2)}")
        for x in l[2:]: e(f"v_pk_add_f32 {vr(tm[0],2)}, {vr(tm[0],2)}, {vr(x,2)}")
        for x in l[1:]: e(f"v_pk_fma_f32 {vr(tm[2],2)}, {vr(x,2)}, {vr(x,2)}, {vr(tm[2],2)}")
        e(f"v_add_f32 v{mr[m]}, v{tm[0]}, v{tm[1]}"); e(f"v_add_f32 v{mr[m]+1}, v{tm[2]}, v{tm[3]}")
    for h in range(2): reduce4("v_add_f32", mr[0]+h, mr[2]+h, mr[1]+h, mr[3]+h)
    e(f"s_lshl_b32 s3, s{sWn}, 10"); e(f"s_add_u32 s3, s3, {LZS}"); e(f"s_lshl_b32 s{G.sT}, s{sWm}, 9"); e(f"s_add_u32 s3, s3, s{G.sT}")
    e(f"v_add_u32 v{tm[5]}, s{sWn}, v{G.g}"); e(f"v_and_b32 v{tm[5]}, 3, v{tm[5]}"); e(f"v_lshl_add_u32 v{tm[5]}, v{tm[5]}, 4, v{G.i}")
    e(f"v_lshlrev_b32 v{tm[5]}, 3, v{tm[5]}"); e(f"v_add_u32 v{tm[5]}, s3, v{tm[5]}")
    e(f"ds_write_b64 v{tm[5]}, {vr(mr[0],2)}")
    for m in range(NM):
        for t in range(3):
            a = G.acc[m][t]
            e(f"v_cvt_pk_bf16_f32 v{pk[t]}, v{a}, v{a+1}"); e(f"v_cvt_pk_bf16_f32 v{pk[t]+1}, v{a+2}, v{a+3}")
        e("s_nop 1")
        for t in range(3): e(f"v_mfma_f32_16x16x16_bf16 {vr(G.acc[m][t],4)}, {vr(pk[t],2)}, {vr(idm,2)}, 0")
    e("s_waitcnt lgkmcnt(0)"); e("s_barrier")
    core.stamp()
    e(f"s_cmp_eq_u32 s{sWm}, 0"); e("s_cbranch_scc0 L_k1_z2s")
    e(f"v_lshlrev_b32 v{tm[5]}, 2, v0")
    e(f"v_add_u32 v{tm[6]}, {LZS}, v{tm[5]}")
    for w in range(4): e(f"ds_read_b32 v{tm[w]}, v{tm[6]} offset:{1024*w}")
    e(f"s_lshl_b32 s3, s{sZi}, 14"); e(f"s_lshl_b32 s{G.sT}, s{sRow}, 3"); e(f"s_add_u32 s3, s3, s{G.sT}")
    e("s_waitcnt lgkmcnt(0)")
    e(f"v_add_f32 v{tm[0]}, v{tm[0]}, v{tm[1]}"); e(f"v_add_f32 v{tm[2]}, v{tm[2]}, v{tm[3]}"); e(f"v_add_f32 v{tm[0]}, v{tm[0]}, v{tm[2]}")
    e(f"buffer_store_dword v{tm[0]}, v{tm[5]}, {sr(SO2,4)}, s3 offen")
    lab("L_k1_z2s")
    e(f"v_add_u32 v{tm[6]}, s{sColB}, v{G.i}"); e(f"v_lshlrev_b32 v{tm[6]}, 12, v{tm[6]}")
    e(f"v_lshrrev_b32 v{tm[5]}, 1, v{G.g}"); e(f"v_lshl_add_u32 v{tm[6]}, v{tm[5]}, 4, v{tm[6]}")
    e(f"s_lshl_b32 s{G.sT}, s{sWm}, 6"); e(f"s_add_u32 s{G.sT}, s{G.sT}, s{sRow}"); e(f"s_lshl_b32 s{G.sT}, s{G.sT}, 1")
    e(f"v_add_u32 v{tm[6]}, s{G.sT}, v{tm[6]}")
    e(f"v_and_b32 v{tm[5]}, 1, v{G.g}"); e(f"v_add_u32 v{tm[5]}, s{sWn}, v{tm[5]}")
    for P in range(2):
        e(f"v_add_u32 v{tm[4]}, {2*P}, v{tm[5]}"); e(f"v_and_b32 v{tm[4]}, 3, v{tm[4]}")
        e(f"v_lshl_add_u32 v{tok[P]}, v{tm[4]}, 5, v{tm[6]}")
    for t in range(3):
        if t == 2: e(f"s_cmp_ge_u32 s{sWn}, s{sNv}"); e("s_cbranch_scc1 L_k1_end")
        e(f"s_mov_b32 s3, {64*4096*t}")
        for P in range(2):
            a = G.acc[2*P][t]; b = G.acc[2*P+1][t]
            e(f"v_cvt_pk_bf16_f32 v{a}, v{a}, v{a+1}"); e(f"v_cvt_pk_bf16_f32 v{a+1}, v{a+2}, v{a+3}")
            e(f"v_cvt_pk_bf16_f32 v{a+2}, v{b}, v{b+1}"); e(f"v_cvt_pk_bf16_f32 v{a+3}, v{b+2}, v{b+3}")
        e("s_nop 1")
        for P in range(2):
            a = G.acc[2*P][t]
            e(f"v_permlane16_swap_b32 v{a}, v{a+2}"); e(f"v_permlane16_swap_b32 v{a+1}, v{a+3}")
        e("s_nop 0")
        for P in range(2): e(f"buffer_store_dwordx4 {vr(G.acc[2*P][t],4)}, v{tok[P]}, {sr(SO,4)}, s3 offen")
    core.stamp_flush(12, 8)
    lab("L_k1_end")
    e("s_endpgm")
    assert ta.n <= G.fr0 + G.frn, (ta.n, G.fr0 + G.frn)
    return va.n, G.stage * G.S
```

```python
from core import *
import core
L2E = 0x3fb8aa3b
import struct
def f32(x): return struct.unpack('<I', struct.pack('<f', x))[0]

def k1():
    va, sa = Alloc(1), Alloc(40)
    NM = 4
    G = Gemm("k1", va, sa, 128, 'tr', 384, 3, 8, NM, 3, NC=8, rot=True)
    LDSX = 32768
    LCS, LZS = LDSX + 1024, LDSX + 2560
    cs = [va(4, 4) for _ in range(3)]
    ones = va(4, 4)
    rs = va(4, 4); gr = va(4, 4)
    ss = [rs, gr]
    wph = va(4, 2); idm = va(2, 2)
    G.alloc_tail(va)
    sRB, sCT, sRow, sLd, sSeg, sColB, sL, sIsZ, sZi = [sa() for _ in range(9)]
    sTok = [sa() for _ in range(4)]
    sC0, sC1, sNv, sWn, sWm = sa(), sa(), sa(), sa(), sa()
    SX, SW, SP, SO, SO2 = 16, 20, 24, 28, 32
    lab("k1_kernel")
    e("s_cmp_ge_u32 s2, 256"); e("s_cbranch_scc1 L_k1_end")
    e("s_load_dwordx2 s[4:5], s[0:1], 0"); e("s_load_dwordx2 s[6:7], s[0:1], 8")
    e("s_load_dwordx2 s[8:9], s[0:1], 16"); e("s_load_dwordx2 s[10:11], s[0:1], 40")
    e("s_load_dwordx2 s[12:13], s[0:1], 88")
    core.stamp_reset(); core.stamp()
    G.setup_lane()
    e(f"s_lshr_b32 s{sRB}, s2, 4"); e(f"s_and_b32 s{sCT}, s2, 15")
    e(f"s_lshl_b32 s{sRow}, s{sRB}, 7")
    e(f"s_lshr_b32 s{sIsZ}, s{sCT}, 3")
    e(f"s_and_b32 s{sZi}, s{sCT}, 3")
    e(f"s_cmp_lt_u32 s{G.sW}, 8"); e("s_cbranch_scc1 L_k1_c")
    e(f"s_sub_u32 s{G.sW}, s{G.sW}, 8")
    e("s_load_dwordx2 s[72:73], s[0:1], 48"); e("s_load_dwordx2 s[74:75], s[0:1], 24"); e("s_load_dwordx2 s[76:77], s[0:1], 64")
    e(f"s_mul_i32 s{sColB}, s{sZi}, 352")
    e(f"s_bfe_u32 s3, s{sCT}, 0x10002"); e("s_mul_i32 s3, s3, 1376")
    e(f"s_add_u32 s{sColB}, s{sColB}, s3")
    e(f"s_lshl_b32 s3, s{sCT}, 7")
    e(f"s_cmp_eq_u32 s{sIsZ}, 1")
    e(f"s_cselect_b32 s{sColB}, s{sColB}, s3")
    e(f"s_mov_b32 s{sLd}, 3072"); e(f"s_cselect_b32 s{sLd}, 2752, s{sLd}")
    e(f"s_cselect_b32 s{sSeg}, 0, 896")
    e(f"s_mov_b32 s{SW+2}, {512*3072}"); e(f"s_cselect_b32 s{SW+2}, {512*2752}, s{SW+2}"); e(f"s_mov_b32 s{SW+3}, 0x00020000")
    e("s_waitcnt lgkmcnt(0)")
    e(f"s_cselect_b32 s{SW}, s10, s6"); e(f"s_cselect_b32 s{SW+1}, s11, s7")
    srd(SX, 4, 2048*1024)
    G.setup_dir_dma(G.vA, 1024, sRow)
    G.setup_tr_dma(sLd, sSeg, sColB)
    e(f"s_mov_b32 s{G.sKa}, 0"); e(f"s_mov_b32 s{G.sKb}, 0")
    e(f"s_lshl_b32 s{sLd}, s{sLd}, 6")
    def advance():
        e(f"s_add_u32 s{G.sKa}, s{G.sKa}, 128"); e(f"s_add_u32 s{G.sKb}, s{G.sKb}, s{sLd}")
    def mid():
        srd(24, 72, 2048*4096); srd(28, 74, 512*1024); srd(32, 76, 688*1024)
        e(f"v_lshlrev_b32 v{G.t0}, 4, v{G.lane}")
        e("s_and_b32 s3, s2, 7"); e("s_lshl_b32 s3, s3, 20"); e(f"s_lshr_b32 s{G.sT}, s2, 3"); e(f"s_lshl_b32 s{G.sT}, s{G.sT}, 15")
        e(f"s_add_u32 s3, s3, s{G.sT}"); e(f"s_lshl_b32 s{G.sT}, s{G.sW}, 13"); e(f"s_add_u32 s3, s3, s{G.sT}")
        for k in range(8):
            e(f"buffer_load_dwordx4 {vr(G.fr0+4*k,4)}, v{G.t0}, s[24:27], s3 offen offset:{1024*(k&3)}")
            if k == 3: e("s_add_u32 s3, s3, 4096")
        e("s_lshl_b32 s3, s2, 2"); e(f"s_add_u32 s3, s3, s{G.sW}"); e("s_lshl_b32 s3, s3, 10")
        e(f"v_add_u32 v{G.t0}, s3, v{G.t0}")
        e(f"buffer_load_dwordx4 {vr(G.fr0+32,4)}, v{G.t0}, s[28:31], 0 offen")
        e(f"buffer_load_dwordx4 {vr(G.fr0+36,4)}, v{G.t0}, s[32:35], 0 offen")
    G.loader(SX, SW, advance, None, None, lambda: (mid(), e("s_barrier"), e("s_barrier")), 0)
    lab("L_k1_c")
    e(f"s_and_b32 s{sWn}, s{G.sW}, 3"); e(f"s_lshr_b32 s{sWm}, s{G.sW}, 2")
    e(f"s_lshl_b32 s3, s{sWm}, 6")
    for p in range(4):
        e(f"s_add_u32 s{sTok[p]}, s{sWn}, {p}"); e(f"s_and_b32 s{sTok[p]}, s{sTok[p]}, 3")
        e(f"s_lshl_b32 s{sTok[p]}, s{sTok[p]}, 4"); e(f"s_add_u32 s{sTok[p]}, s{sTok[p]}, s3")
    G.setup_reads(sTok, sWn, 4)
    e("s_waitcnt lgkmcnt(0)")
    srd(SP, 8, 32*512)
    pfd = va()
    srd(SX, 4, 2048*1024); srd(SW, 6, 512*3072); srd(SO, 10, 512*2752)
    e("s_lshl_b32 s3, s2, 3"); e(f"s_add_u32 s3, s3, s{G.sW}"); e("s_lshl_b32 s3, s3, 12")
    e(f"v_lshlrev_b32 v{G.t0}, 6, v{G.lane}"); e(f"v_add_u32 v{G.t0}, s3, v{G.t0}")
    e(f"v_subrev_u32 v{G.t1}, {512*4096}, v{G.t0}"); e(f"v_subrev_u32 v{G.t2}, {896*4096}, v{G.t0}")
    e(f"buffer_load_dword v{pfd}, v{G.t0}, {sr(SX,4)}, 0 offen")
    e(f"buffer_load_dword v{pfd}, v{G.t1}, {sr(SW,4)}, 0 offen")
    e(f"buffer_load_dword v{pfd}, v{G.t2}, {sr(SO,4)}, 0 offen")
    e("s_lshr_b32 s3, s2, 3"); e("s_and_b32 s3, s3, 7"); e(f"s_xor_b32 s70, s{G.sW}, 7"); e("s_lshl_b32 s70, s70, 3")
    e("s_add_u32 s70, s70, s3"); e("s_cmp_lt_u32 s70, 5"); e("s_cbranch_scc0 L_k1_nocode")
    e("s_getpc_b64 s[70:71]"); lab("L_k1_pc")
    e("s_sub_u32 s70, s70, L_k1_pc-k1_kernel"); e("s_subb_u32 s71, s71, 0")
    e("s_lshl_b32 s3, s3, 12")
    e(f"v_lshlrev_b32 v{G.t0}, 6, v{G.lane}"); e(f"v_add_u32 v{G.t0}, s3, v{G.t0}")
    e(f"v_min_u32 v{G.t0}, L_text_end-k1_kernel-4, v{G.t0}")
    e(f"v_mov_b32 v{cs[0]+1}, s71")
    e(f"v_add_co_u32 v{cs[0]}, vcc, s70, v{G.t0}")
    e(f"v_addc_co_u32 v{cs[0]+1}, vcc, 0, v{cs[0]+1}, vcc")
    e(f"global_load_dword v{pfd}, {vr(cs[0],2)}, off")
    lab("L_k1_nocode")
    e(f"s_and_b32 s3, s{sCT}, 7"); e("s_lshl_b32 s3, s3, 2"); e(f"s_add_u32 s3, s3, s{sWn}"); e("s_lshl_b32 s3, s3, 9")
    e(f"v_lshlrev_b32 v{G.t0}, 7, v{G.g}"); e(f"v_lshl_add_u32 v{G.t0}, v{G.i}, 1, v{G.t0}")
    for r in range(4): e(f"buffer_load_ushort v{wph+r}, v{G.t0}, {sr(SP,4)}, s3 offen offset:{32*r}")
    for r in range(4): e(f"v_mov_b32 v{ones+r}, 0x3f803f80")
    for t in range(3):
        for r in range(4): e(f"v_mov_b32 v{cs[t]+r}, 0")
    for r in range(8): e(f"v_mov_b32 v{rs+r}, 0")
    e(f"v_lshlrev_b32 v{G.t0}, 2, v{G.g}"); e(f"v_sub_u32 v{G.t0}, v{G.i}, v{G.t0}")
    e(f"v_mov_b32 v{G.t1}, 0x3f80"); e(f"v_mov_b32 v{G.t2}, 0x3f800000")
    for q in range(2):
        e(f"v_cmp_eq_u32 vcc, {2*q}, v{G.t0}"); e("s_nop 1"); e(f"v_cndmask_b32 v{idm+q}, 0, v{G.t1}, vcc")
        e(f"v_cmp_eq_u32 vcc, {2*q+1}, v{G.t0}"); e("s_nop 1"); e(f"v_cndmask_b32 v{idm+q}, v{idm+q}, v{G.t2}, vcc")
    for r in range(4): e(f"v_cmp_eq_u32 s[{70+2*r}:{71+2*r}], {r}, v{G.t0}")
    def extra(hh):
        x = [f"v_mfma_f32_16x16x32_bf16 {vr(rs,4)}, {vr(ones,4)}, {vr(G.fa[hh][0],4)}, {vr(rs,4)}",
             f"v_mfma_f32_16x16x32_bf16 {vr(gr,4)}, {vr(G.fa[hh][0],4)}, {vr(G.fa[hh][0],4)}, {vr(gr,4)}"]
        x.append(f"s_cmp_eq_u32 s{sWm}, {hh}")
        x.append(f"s_cbranch_scc0 L_k1_cs{hh}")
        x += [f"v_mfma_f32_16x16x32_bf16 {vr(cs[t],4)}, {vr(G.fb[hh][t],4)}, {vr(ones,4)}, {vr(cs[t],4)}" for t in range(3)]
        x.append(f"L_k1_cs{hh}:")
        return x
    G.run(extra)
    ta = Alloc(G.fr0)
    tm = [ta() for _ in range(8)]
    mr = [ta(2, 2) for _ in range(NM)]
    tok = [ta() for _ in range(NM)]
    kv = [ta(4, 4) for _ in range(4)]
    e(f"s_mul_i32 s{G.sT}, s{G.sW}, 192"); e(f"s_add_u32 s{G.sT}, s{G.sT}, {LCS}")
    e(f"v_lshlrev_b32 v{tm[6]}, 4, v{G.g}"); e(f"v_add_u32 v{tm[6]}, s{G.sT}, v{tm[6]}")
    for t in range(3): e(f"ds_write_b128 v{tm[6]}, {vr(cs[t],4)} offset:{64*t}")
    e(f"v_cndmask_b32 v{gr}, 0, v{gr}, s[70:71]")
    for r in range(1, 4): e(f"v_cndmask_b32 v{gr}, v{gr}, v{gr+r}, s[{70+2*r}:{71+2*r}]")
    xreduce(["v_add_f32"], [gr], tm[:1])
    e(f"s_mov_b32 s3, {f32(1/512)}")
    e(f"v_lshlrev_b32 v{tm[4]}, 3, v{G.i}")
    e(f"s_lshl_b32 s{G.sT}, s{sTok[0]}, 3"); e(f"s_add_u32 s{G.sT}, s{G.sT}, {LDSX}")
    e(f"v_add_u32 v{tm[5]}, s{G.sT}, v{tm[4]}")
    a = mr[0]
    e(f"v_mul_f32 v{a}, s3, v{ss[0]}"); e(f"v_mul_f32 v{a+1}, s3, v{ss[1]}")
    e(f"v_fma_f32 v{a+1}, -v{a}, v{a}, v{a+1}"); e(f"v_max_f32 v{a+1}, 0, v{a+1}")
    e(f"v_add_f32 v{a+1}, {f32(1e-5)}, v{a+1}"); e(f"v_rsq_f32 v{a+1}, v{a+1}")
    e(f"s_xor_b32 s{G.sT}, s{G.sW}, 4"); e(f"s_mul_i32 s{G.sT}, s{G.sT}, 192"); e(f"s_add_u32 s{G.sT}, s{G.sT}, {LCS}")
    e(f"ds_write_b64 v{tm[5]}, {vr(a,2)}")
    e(f"v_lshlrev_b32 v{tm[6]}, 4, v{G.g}"); e(f"v_add_u32 v{tm[6]}, s{G.sT}, v{tm[6]}")
    for p in range(1, 4):
        e(f"s_lshl_b32 s{G.sT}, s{sTok[p]}, 3"); e(f"s_add_u32 s{G.sT}, s{G.sT}, {LDSX}")
        e(f"v_add_u32 v{tm[p]}, s{G.sT}, v{tm[4]}")
    e("s_waitcnt lgkmcnt(0)"); e("s_barrier")
    for t in range(3): e(f"ds_read_b128 {vr(kv[t],4)}, v{tm[6]} offset:{64*t}")
    for p in range(1, 4): e(f"ds_read_b64 {vr(mr[p],2)}, v{tm[p]}")
    for m in range(NM):
        e(f"s_add_u32 s{G.sT}, s{sTok[m]}, s{sRow}")
        e(f"v_add_u32 v{tok[m]}, s{G.sT}, v{G.i}")
    e("s_waitcnt lgkmcnt(3)")
    for t in range(3):
        for r in range(4): e(f"v_add_f32 v{cs[t]+r}, v{cs[t]+r}, v{kv[t]+r}")
    e("s_waitcnt lgkmcnt(0)")
    for m in range(NM):
        for t in range(3):
            for r in (0, 2):
                a = G.acc[m][t] + r
                e(f"v_pk_fma_f32 {vr(a,2)}, {vr(cs[t]+r,2)}, {vr(mr[m],2)}, {vr(a,2)} op_sel:[0,0,0] op_sel_hi:[1,0,1] neg_lo:[1,0,0] neg_hi:[1,0,0]")
            for r in (0, 2):
                a = G.acc[m][t] + r
                e(f"v_pk_mul_f32 {vr(a,2)}, {vr(a,2)}, {vr(mr[m],2)} op_sel:[0,1] op_sel_hi:[1,1]")
    core.stamp()
    e(f"s_cmp_eq_u32 s{sIsZ}, 1"); e("s_cbranch_scc1 L_k1_z")
    srd(SO, 12, 4*MB, WS_PHIQ); srd(SO2, 12, 2*MB, WS_KVP)
    e(f"s_mov_b32 s{sL}, {L2E}"); e(f"s_mov_b32 s68, {L2E}"); e(f"s_mov_b32 s69, {L2E}")
    for k in kv:
        for r in range(4): e(f"v_mov_b32 v{k+r}, 0")
    pk = [ta(2, 2) for _ in range(6)]
    e("s_waitcnt vmcnt(0)")
    e(f"v_lshl_or_b32 v{wph}, v{wph+1}, 16, v{wph}"); e(f"v_lshl_or_b32 v{wph+1}, v{wph+3}, 16, v{wph+2}")
    for m in range(NM):
        o = 3 * (m & 1)
        for t in range(3):
            a = G.acc[m][t]
            e(f"v_cvt_pk_bf16_f32 v{pk[o+t]}, v{a}, v{a+1}"); e(f"v_cvt_pk_bf16_f32 v{pk[o+t]+1}, v{a+2}, v{a+3}")
        e("s_nop 1")
        e(f"v_mfma_f32_16x16x16_bf16 {vr(G.acc[m][0],4)}, {vr(wph,2)}, {vr(pk[o],2)}, 0")
        e(f"v_mfma_f32_16x16x16_bf16 {vr(G.acc[m][1],4)}, {vr(wph,2)}, {vr(pk[o+1],2)}, 0")
        e(f"v_mfma_f32_16x16x16_bf16 {vr(G.acc[m][2],4)}, {vr(pk[o+2],2)}, {vr(idm,2)}, 0")
    e(f"s_and_b32 s3, s{sCT}, 7"); e("s_lshl_b32 s3, s3, 2"); e(f"s_add_u32 s3, s3, s{sWn}")
    e(f"s_lshl_b32 s{G.sT}, s3, 6")
    e(f"v_lshlrev_b32 v{tm[6]}, 4, v{G.g}"); e(f"v_add_u32 v{tm[6]}, s{G.sT}, v{tm[6]}")
    stb = ta(4, 2); st = [stb + k for k in range(4)]
    ex = [[ta(4, 4) for _ in range(2)] for _ in range(2)]
    tr = [ta(4, 4) for _ in range(2)]
    e("s_nop 4")
    for m in range(NM):
        for j in range(2):
            a = G.acc[m][j]
            e(f"v_max3_f32 v{st[j]}, v{a}, v{a+1}, v{a+2}"); e(f"v_max3_f32 v{st[2+j]}, -v{a}, -v{a+1}, -v{a+2}")
            e(f"v_max_f32 v{st[j]}, v{st[j]}, v{a+3}"); e(f"v_max_f32_e64 v{st[2+j]}, v{st[2+j]}, -v{a+3}")
        reduce4("v_max_f32", *st)
        e(f"v_mul_f32 v{st[0]}, s{sL}, v{st[0]}")
        bcast4(*st)
        for j in range(2):
            a = G.acc[m][j]
            for r in (0, 2):
                e(f"v_pk_fma_f32 {vr(ex[j][0]+r,2)}, {vr(a+r,2)}, s[68:69], {vr(stb,2)} op_sel:[0,0,{j}] op_sel_hi:[1,1,{j}] neg_lo:[0,0,1] neg_hi:[0,0,1]")
                e(f"v_pk_fma_f32 {vr(ex[j][1]+r,2)}, {vr(a+r,2)}, s[68:69], {vr(stb+2,2)} op_sel:[0,0,{j}] op_sel_hi:[1,1,{j}] neg_lo:[1,0,1] neg_hi:[1,0,1]")
        for j in range(2):
            for sg in range(2):
                for r in range(4): e(f"v_exp_f32 v{ex[j][sg]+r}, v{ex[j][sg]+r}")
        a = G.acc[m][2]
        e(f"v_cvt_pk_bf16_f32 v{pk[4]}, v{a}, v{a+1}"); e(f"v_cvt_pk_bf16_f32 v{pk[4]+1}, v{a+2}, v{a+3}")
        for j in range(2):
            for sg in range(2):
                b = ex[j][sg]; q = st[2*sg+j]
                tp = tm[2*sg]
                e(f"v_pk_add_f32 {vr(tp,2)}, {vr(b,2)}, {vr(b+2,2)}"); e(f"v_add_f32 v{q}, v{tp}, v{tp+1}")
        reduce4("v_add_f32", *st)
        e(f"v_rcp_f32 v{st[0]}, v{st[0]}")
        e(f"v_lshl_add_u32 v{tm[7]}, v{tok[m]}, 11, v{tm[6]}")
        bcast4(*st)
        for j in range(2):
            for sg in range(2):
                b = ex[j][sg]
                for r in (0, 2): e(f"v_pk_mul_f32 {vr(b+r,2)}, {vr(b+r,2)}, {vr(stb+2*sg,2)} op_sel:[0,{j}] op_sel_hi:[1,{j}]")
        a = G.acc[m][0]
        for sg in range(2):
            b = ex[0][sg]
            e(f"v_cvt_pk_bf16_f32 v{a+2*sg}, v{b}, v{b+1}"); e(f"v_cvt_pk_bf16_f32 v{a+2*sg+1}, v{b+2}, v{b+3}")
            b = ex[1][sg]
            e(f"v_cvt_pk_bf16_f32 v{pk[sg]}, v{b}, v{b+1}"); e(f"v_cvt_pk_bf16_f32 v{pk[sg]+1}, v{b+2}, v{b+3}")
        e(f"buffer_store_dwordx4 {vr(a,4)}, v{tm[7]}, {sr(SO,4)}, 0 offen")
        e("s_nop 0")
        for sg in range(2):
            e(f"v_mfma_f32_16x16x16_bf16 {vr(tr[sg],4)}, {vr(pk[sg],2)}, {vr(idm,2)}, 0")
        e("s_nop 7")
        for sg in range(2):
            b = tr[sg]
            e(f"v_cvt_pk_bf16_f32 v{pk[2+sg]}, v{b}, v{b+1}"); e(f"v_cvt_pk_bf16_f32 v{pk[2+sg]+1}, v{b+2}, v{b+3}")
        e("s_nop 1")
        for sg in range(2):
            e(f"v_mfma_f32_16x16x16_bf16 {vr(kv[sg],4)}, {vr(pk[2+sg],2)}, {vr(pk[4],2)}, {vr(kv[sg],4)}")
            e(f"v_mfma_f32_16x16x16_bf16 {vr(kv[2+sg],4)}, {vr(pk[2+sg],2)}, {vr(ones,2)}, {vr(kv[2+sg],4)}")
    core.stamp()
    e(f"s_lshl_b32 s{G.sT}, s{sWn}, 12"); e(f"v_lshlrev_b32 v{tm[0]}, 4, v{G.lane}"); e(f"v_add_u32 v{tm[0]}, s{G.sT}, v{tm[0]}")
    e(f"s_cmp_eq_u32 s{sWm}, 0"); e("s_cbranch_scc1 L_k1_kv0")
    e("s_nop 4")
    for q in range(4): e(f"ds_write_b128 v{tm[0]}, {vr(kv[q],4)} offset:{1024*q}")
    e("s_waitcnt lgkmcnt(0)"); e("s_barrier"); e("s_endpgm")
    lab("L_k1_kv0")
    e(f"s_lshl_b32 s{G.sT}, s{sRB}, 5"); e(f"s_add_u32 s3, s3, s{G.sT}")
    e(f"s_lshl_b32 s{G.sT}, s3, 11"); e("s_lshl_b32 s3, s3, 7"); e(f"s_add_u32 s3, s3, {WS_ZP-WS_KVP}")
    e("s_barrier")
    for q in range(4): e(f"ds_read_b128 {vr(ex[q>>1][q&1],4)}, v{tm[0]} offset:{1024*q}")
    e(f"v_lshlrev_b32 v{tm[0]}, 5, v{G.lane}"); e(f"v_lshlrev_b32 v{tm[1]}, 5, v{G.g}")
    e("s_waitcnt lgkmcnt(0)")
    for q in range(4):
        for r in range(4): e(f"v_add_f32 v{kv[q]+r}, v{kv[q]+r}, v{ex[q>>1][q&1]+r}")
    e(f"buffer_store_dwordx4 {vr(kv[0],4)}, v{tm[0]}, {sr(SO2,4)}, s{G.sT} offen")
    e(f"buffer_store_dwordx4 {vr(kv[1],4)}, v{tm[0]}, {sr(SO2,4)}, s{G.sT} offen offset:16")
    core.stamp_flush(0, 0)
    core._nst[0] -= 1
    e(f"v_cmp_eq_u32 vcc, 0, v{G.i}"); e("s_and_saveexec_b64 s[36:37], vcc")
    e(f"buffer_store_dwordx4 {vr(kv[2],4)}, v{tm[1]}, {sr(SO2,4)}, s3 offen")
    e(f"buffer_store_dwordx4 {vr(kv[3],4)}, v{tm[1]}, {sr(SO2,4)}, s3 offen offset:16")
    e("s_endpgm")
    lab("L_k1_z")
    c0 = -2.0 * 0.7978845608028654 * 1.4426950408889634
    e(f"v_mov_b32 v{tm[7]}, {f32(c0)}"); e(f"v_mov_b32 v{tm[6]}, {f32(c0*0.044715)}"); e(f"v_mov_b32 v{tm[4]}, 1.0")
    e(f"s_cmp_eq_u32 s{sZi}, 3"); e(f"s_cselect_b32 s{sNv}, 2, 3")
    for m in range(NM):
        for t in range(3):
            a = G.acc[m][t]
            for r in (0, 2): e(f"v_pk_mul_f32 {vr(tm[r],2)}, {vr(a+r,2)}, {vr(a+r,2)}")
            for r in (0, 2): e(f"v_pk_fma_f32 {vr(tm[r],2)}, {vr(tm[r],2)}, {vr(tm[6],2)}, {vr(tm[6],2)} op_sel:[0,0,1] op_sel_hi:[1,0,1]")
            for r in (0, 2): e(f"v_pk_mul_f32 {vr(tm[r],2)}, {vr(tm[r],2)}, {vr(a+r,2)}")
            for r in range(4): e(f"v_exp_f32 v{tm[r]}, v{tm[r]}")
            for r in (0, 2): e(f"v_pk_add_f32 {vr(tm[r],2)}, {vr(tm[r],2)}, {vr(tm[4],2)} op_sel:[0,0] op_sel_hi:[1,0]")
            for r in range(4): e(f"v_rcp_f32 v{tm[r]}, v{tm[r]}")
            for r in (0, 2): e(f"v_pk_mul_f32 {vr(a+r,2)}, {vr(tm[r],2)}, {vr(a+r,2)}")
    core.stamp()
    e(f"s_mul_i32 s{sColB}, s{sZi}, 176"); e(f"s_lshl_b32 s3, s{sWn}, 4"); e(f"s_add_u32 s{sColB}, s{sColB}, s3")
    e(f"s_bitcmp1_b32 s{sCT}, 2"); e("s_cbranch_scc1 L_k1_z2")
    srd(SO, 12, 2048*LDZ1, WS_Z1)
    e(f"s_lshl_b32 s3, s{sColB}, 1"); e(f"v_lshrrev_b32 v{tm[6]}, 1, v{G.g}"); e(f"v_lshlrev_b32 v{tm[6]}, 4, v{tm[6]}"); e(f"v_add_u32 v{tm[6]}, s3, v{tm[6]}")
    e(f"s_mov_b32 s3, {LDZ1}")
    e(f"v_and_b32 v{tm[5]}, 1, v{G.g}"); e(f"v_cmp_eq_u32 vcc, 1, v{tm[5]}"); e("s_nop 1")
    for P in range(2):
        e(f"v_cndmask_b32 v{tok[2*P]}, v{tok[2*P]}, v{tok[2*P+1]}, vcc")
        e(f"v_mad_u32_u24 v{tok[2*P]}, v{tok[2*P]}, s3, v{tm[6]}")
    for t in range(3):
        if t == 2: e(f"s_cmp_ge_u32 s{sWn}, s{sNv}"); e("s_cbranch_scc1 L_k1_end")
        pairstore([(G.acc[2*P][t], G.acc[2*P+1][t], f"v{tok[2*P]}, {sr(SO,4)}, 0 offen offset:{128*t}") for P in range(2)])
    e("s_endpgm")
    lab("L_k1_z2")
    srd(SO, 12, 688*4096, WS_Z2T); srd(SO2, 12, 65536, WS_STATS)
    e(f"s_cmp_lt_u32 s{sWn}, s{sNv}"); e("s_cbranch_scc1 L_k1_z2v")
    for m in range(NM):
        for r in range(4): e(f"v_mov_b32 v{G.acc[m][2]+r}, 0")
    lab("L_k1_z2v")
    for m in range(NM):
        l = [G.acc[m][t] + r for t in range(3) for r in (0, 2)]
        e(f"v_pk_add_f32 {vr(tm[0],2)}, {vr(l[0],2)}, {vr(l[1],2)}"); e(f"v_pk_mul_f32 {vr(tm[2],2)}, {vr(l[0],2)}, {vr(l[0],2)}")
        for x in l[2:]: e(f"v_pk_add_f32 {vr(tm[0],2)}, {vr(tm[0],2)}, {vr(x,2)}")
        for x in l[1:]: e(f"v_pk_fma_f32 {vr(tm[2],2)}, {vr(x,2)}, {vr(x,2)}, {vr(tm[2],2)}")
        e(f"v_add_f32 v{mr[m]}, v{tm[0]}, v{tm[1]}"); e(f"v_add_f32 v{mr[m]+1}, v{tm[2]}, v{tm[3]}")
    for h in range(2): reduce4("v_add_f32", mr[0]+h, mr[2]+h, mr[1]+h, mr[3]+h)
    e(f"s_lshl_b32 s3, s{sWn}, 10"); e(f"s_add_u32 s3, s3, {LZS}"); e(f"s_lshl_b32 s{G.sT}, s{sWm}, 9"); e(f"s_add_u32 s3, s3, s{G.sT}")
    e(f"v_add_u32 v{tm[5]}, s{sWn}, v{G.g}"); e(f"v_and_b32 v{tm[5]}, 3, v{tm[5]}"); e(f"v_lshl_add_u32 v{tm[5]}, v{tm[5]}, 4, v{G.i}")
    e(f"v_lshlrev_b32 v{tm[5]}, 3, v{tm[5]}"); e(f"v_add_u32 v{tm[5]}, s3, v{tm[5]}")
    e(f"ds_write_b64 v{tm[5]}, {vr(mr[0],2)}")
    for m in range(NM):
        for t in range(3):
            a = G.acc[m][t]
            e(f"v_cvt_pk_bf16_f32 v{pk[t]}, v{a}, v{a+1}"); e(f"v_cvt_pk_bf16_f32 v{pk[t]+1}, v{a+2}, v{a+3}")
        e("s_nop 1")
        for t in range(3): e(f"v_mfma_f32_16x16x16_bf16 {vr(G.acc[m][t],4)}, {vr(pk[t],2)}, {vr(idm,2)}, 0")
    e("s_waitcnt lgkmcnt(0)"); e("s_barrier")
    core.stamp()
    e(f"s_cmp_eq_u32 s{sWm}, 0"); e("s_cbranch_scc0 L_k1_z2s")
    e(f"v_lshlrev_b32 v{tm[5]}, 2, v0")
    e(f"v_add_u32 v{tm[6]}, {LZS}, v{tm[5]}")
    for w in range(4): e(f"ds_read_b32 v{tm[w]}, v{tm[6]} offset:{1024*w}")
    e(f"s_lshl_b32 s3, s{sZi}, 14"); e(f"s_lshl_b32 s{G.sT}, s{sRow}, 3"); e(f"s_add_u32 s3, s3, s{G.sT}")
    e("s_waitcnt lgkmcnt(0)")
    e(f"v_add_f32 v{tm[0]}, v{tm[0]}, v{tm[1]}"); e(f"v_add_f32 v{tm[2]}, v{tm[2]}, v{tm[3]}"); e(f"v_add_f32 v{tm[0]}, v{tm[0]}, v{tm[2]}")
    e(f"buffer_store_dword v{tm[0]}, v{tm[5]}, {sr(SO2,4)}, s3 offen")
    lab("L_k1_z2s")
    e(f"v_add_u32 v{tm[6]}, s{sColB}, v{G.i}"); e(f"v_lshlrev_b32 v{tm[6]}, 12, v{tm[6]}")
    e(f"v_lshrrev_b32 v{tm[5]}, 1, v{G.g}"); e(f"v_lshl_add_u32 v{tm[6]}, v{tm[5]}, 4, v{tm[6]}")
    e(f"s_lshl_b32 s{G.sT}, s{sWm}, 6"); e(f"s_add_u32 s{G.sT}, s{G.sT}, s{sRow}"); e(f"s_lshl_b32 s{G.sT}, s{G.sT}, 1")
    e(f"v_add_u32 v{tm[6]}, s{G.sT}, v{tm[6]}")
    e(f"v_and_b32 v{tm[5]}, 1, v{G.g}"); e(f"v_add_u32 v{tm[5]}, s{sWn}, v{tm[5]}")
    for P in range(2):
        e(f"v_add_u32 v{tm[4]}, {2*P}, v{tm[5]}"); e(f"v_and_b32 v{tm[4]}, 3, v{tm[4]}")
        e(f"v_lshl_add_u32 v{tok[P]}, v{tm[4]}, 5, v{tm[6]}")
    for t in range(3):
        if t == 2: e(f"s_cmp_ge_u32 s{sWn}, s{sNv}"); e("s_cbranch_scc1 L_k1_end")
        e(f"s_mov_b32 s3, {64*4096*t}")
        for P in range(2):
            a = G.acc[2*P][t]; b = G.acc[2*P+1][t]
            e(f"v_cvt_pk_bf16_f32 v{a}, v{a}, v{a+1}"); e(f"v_cvt_pk_bf16_f32 v{a+1}, v{a+2}, v{a+3}")
            e(f"v_cvt_pk_bf16_f32 v{a+2}, v{b}, v{b+1}"); e(f"v_cvt_pk_bf16_f32 v{a+3}, v{b+2}, v{b+3}")
        e("s_nop 1")
        for P in range(2):
            a = G.acc[2*P][t]
            e(f"v_permlane16_swap_b32 v{a}, v{a+2}"); e(f"v_permlane16_swap_b32 v{a+1}, v{a+3}")
        e("s_nop 0")
        for P in range(2): e(f"buffer_store_dwordx4 {vr(G.acc[2*P][t],4)}, v{tok[P]}, {sr(SO,4)}, s3 offen")
    core.stamp_flush(12, 8)
    lab("L_k1_end")
    e("s_endpgm")
    assert ta.n <= G.fr0 + G.frn, (ta.n, G.fr0 + G.frn)
    return va.n, G.stage * G.S
```
